```python
import torch

def _softmax(x, axis=-1):
    return torch.softmax(x, dim=axis)
def _gelu(x):
    return torch.nn.functional.gelu(x, approximate="tanh")
def _silu(x):
    return torch.nn.functional.silu(x)
def _sigmoid(x):
    return torch.sigmoid(x)
def _layernorm(x, axis=-1, eps=1e-5):
    m = x.mean(dim=axis, keepdim=True)
    v = x.var(dim=axis, keepdim=True, unbiased=False)
    return (x - m) / torch.sqrt(v + eps)
def _scatter_add(tgt, idx, src, axis=0):
    return tgt.clone().index_add_(axis, idx, src)
def _segment_sum(src, seg, n):
    out = torch.zeros((n,) + src.shape[1:], dtype=src.dtype)
    return out.index_add_(0, seg, src)
def _pad(x, pw):
    flat = tuple(v for pair in reversed(pw) for v in pair)
    return torch.nn.functional.pad(x, flat)

kernel_name = 'standalone__mpnn_edge_mlp__graph'

def setup_inputs():

    _w = (lambda a: (lambda t: t.to(torch.bfloat16) if t.is_floating_point() else t)(torch.as_tensor(a)))
    N, deg, D, De = 10000, 32, 128, max(4, 1)
    E = N * deg
    return {
        "x": _w((lambda *s: torch.randn(*s, dtype=torch.bfloat16) * 0.05)(N, D)),
        "e_attr": _w((lambda *s: torch.randn(*s, dtype=torch.bfloat16) * 0.4)(E, De)),
        "src": _w((lambda lo, hi, *s: torch.randint(lo, hi, s))(0, N, E).to(torch.int64)),
        "dst": _w((lambda lo, hi, *s: torch.randint(lo, hi, s))(0, N, E).to(torch.int64)),
        "w_msg": _w((lambda *s: torch.randn(*s, dtype=torch.bfloat16) * 0.4)(2 * D + De, D)),
        "w_upd": _w((lambda *s: torch.randn(*s, dtype=torch.bfloat16) * 0.05)(2 * D, D)),
    }

def reference(x, e_attr, src, dst, w_msg, w_upd):
    N, D = x.shape
    m_in = torch.concatenate([x[src], x[dst], e_attr], axis=-1)
    msg = _silu(m_in @ w_msg)
    agg = _segment_sum(msg, dst, N)
    return _silu(torch.concatenate([x, agg], axis=-1) @ w_upd)
```

```python
import sys

N = 10000
E = 320000
G = 125
CH = 2560
T = 256
OFF_SLOT = 0x280000
OFF_WF = 0x680000
OFF_OVC = 0x6A0000
OFF_OVF = 0x6B0000
WS_SIZE = 0x1000000
NLOG2E = 0xBFB8AA3B
CSC = 0x2F800000
FSC = 0xAF317218
MAGIC625 = 6871948

out = []
def e(s=""):
    out.append("    " + s if s and not s.endswith(":") else s)
def lab(s):
    out.append(s + ":")
def vr(b, n):
    return f"v[{b}:{b+n-1}]" if n > 1 else f"v{b}"
def sr(b, n):
    return f"s[{b}:{b+n-1}]" if n > 1 else f"s{b}"
def srd(d, lo, hi, size, stride=0):
    e(f"s_mov_b32 s{d}, s{lo}")
    if stride:
        e(f"s_or_b32 s{d+1}, s{hi}, {hex(stride << 16)}")
    else:
        e(f"s_mov_b32 s{d+1}, s{hi}")
    e(f"s_mov_b32 s{d+2}, {size}")
    e(f"s_mov_b32 s{d+3}, 0x00020000")

K1 = "mpnn_prep_kernel"
K2 = "mpnn_main_kernel"
K1_LDS = 82944
K2_LDS = 142336

HEADER = f"""; Kernarg layout for this problem (72 bytes, ptrs only, base s[0:1]):
; @launch kernel={K1} grid=(253,1,1) block=(640,1,1) lds={K1_LDS}
; @launch kernel={K2} grid=(256,1,1) block=(512,1,1) lds={K2_LDS}
.amdgcn_target "amdgcn-amd-amdhsa--gfx950"
"""

def kd(name, vgpr, sgpr):
    acc = (vgpr + 3) // 4 * 4
    return f""".section .rodata,"a"
.p2align 6
.amdhsa_kernel {name}
  .amdhsa_next_free_vgpr {vgpr}
  .amdhsa_next_free_sgpr {sgpr}
  .amdhsa_accum_offset {acc}
  .amdhsa_group_segment_fixed_size 0
  .amdhsa_kernarg_size 72
  .amdhsa_user_sgpr_count 2
  .amdhsa_user_sgpr_kernarg_segment_ptr 1
  .amdhsa_system_sgpr_workgroup_id_x 1
.end_amdhsa_kernel
"""

def begin(name):
    out.append(".text")
    out.append(f".globl {name}")
    out.append(".p2align 8")
    out.append(f".type {name},@function")
    lab(name)

def gen_k1():
    begin(K1)
    e("s_cmp_ge_u32 s2, 253")
    e("s_cbranch_scc1 K1_END")
    e("s_load_dwordx4 s[4:7], s[0:1], 0")
    e("s_load_dwordx4 s[8:11], s[0:1], 16")
    e("s_load_dwordx4 s[12:15], s[0:1], 32")
    e("s_load_dwordx2 s[16:17], s[0:1], 64")
    e("v_and_b32 v2, 63, v0")
    e("v_lshrrev_b32 v3, 6, v0")
    e("v_lshlrev_b32 v1, 4, v0")
    e("v_readfirstlane_b32 s32, v3")
    e("s_cmp_ge_u32 s2, 125")
    e("s_cbranch_scc1 K1_GEMM")
    e("s_mul_i32 s3, s2, 10240")
    e("s_waitcnt lgkmcnt(0)")
    srd(24, 10, 11, E * 4)
    srd(28, 8, 9, E * 4)
    e("buffer_load_dwordx4 v[4:7], v1, s[24:27], s3 offen")
    e("buffer_load_dwordx4 v[8:11], v1, s[28:31], s3 offen")
    srd(20, 16, 17, WS_SIZE)
    for i in range(4):
        e(f"v_mov_b32 v{12+i}, -1")
    e("v_mov_b32 v16, 0")
    e("v_lshlrev_b32 v17, 2, v0")
    e("ds_write_b128 v1, v[12:15]")
    e("ds_write_b128 v1, v[12:15] offset:10240")
    e("ds_write_b128 v1, v[12:15] offset:20480")
    e("ds_write_b32 v17, v16 offset:32768")
    e("s_cmp_ge_u32 s32, 2")
    e("s_cbranch_scc1 K1_S1")
    e("ds_write_b128 v1, v[12:15] offset:30720")
    lab("K1_S1")
    e(f"s_mov_b32 s33, {MAGIC625}")
    e("v_mov_b32 v18, 1")
    e("v_lshlrev_b32 v19, 22, v0")
    e("s_waitcnt lgkmcnt(0)")
    e("s_barrier")
    e("s_waitcnt vmcnt(1)")
    for j in range(4):
        e(f"v_lshl_add_u32 v16, v{4+j}, 4, 15")
        e(f"v_mul_hi_u32_u24 v{21+2*j}, s33, v16")
        e(f"v_lshlrev_b32 v17, 2, v{21+2*j}")
        e(f"ds_add_rtn_u32 v{28+j}, v17, v18 offset:32768")
    for j in range(4):
        e(f"v_mul_u32_u24 v16, 625, v{21+2*j}")
        e("v_lshrrev_b32 v16, 4, v16")
        e(f"v_sub_u32 v{32+j}, v{4+j}, v16")
        e(f"v_lshl_or_b32 v{32+j}, v{32+j}, 14, v19")
        if j:
            e(f"v_or_b32 v{32+j}, {hex(j << 20)}, v{32+j}")
        e(f"v_lshlrev_b32 v{36+j}, 7, v{21+2*j}")
    e("s_waitcnt vmcnt(0)")
    for j in range(4):
        e(f"v_or_b32 v{20+2*j}, v{32+j}, v{8+j}")
    e("s_waitcnt lgkmcnt(0)")
    for j in range(4):
        e(f"v_lshl_add_u32 v{36+j}, v{28+j}, 2, v{36+j}")
    e("v_max_u32 v16, v28, v29")
    e("v_max3_u32 v16, v16, v30, v31")
    e("v_cmp_lt_u32 vcc, 31, v16")
    e("s_cbranch_vccnz K1_SLOW")
    for j in range(4):
        e(f"ds_write_b32 v{36+j}, v{20+2*j}")
    lab("K1_S2")
    e("v_lshrrev_b32 v16, 3, v0")
    e("v_mul_u32_u24 v16, 16000, v16")
    e("v_and_b32 v17, 7, v0")
    e("v_lshl_add_u32 v16, v17, 4, v16")
    e("s_lshl_b32 s34, s2, 7")
    e(f"s_add_u32 s34, s34, {OFF_SLOT}")
    e("s_add_u32 s35, s34, 1280000")
    e("s_add_u32 s36, s34, 2560000")
    e("s_add_u32 s37, s34, 3840000")
    e("s_waitcnt lgkmcnt(0)")
    e("s_barrier")
    e("ds_read_b128 v[40:43], v1")
    e("ds_read_b128 v[44:47], v1 offset:10240")
    e("ds_read_b128 v[48:51], v1 offset:20480")
    e("s_cmp_ge_u32 s32, 2")
    e("s_cbranch_scc1 K1_S3")
    e("ds_read_b128 v[52:55], v1 offset:30720")
    e("v_mov_b32 v17, 0")
    e("ds_read_b32 v56, v17 offset:33792")
    e("s_waitcnt lgkmcnt(0)")
    e("buffer_store_dwordx4 v[52:55], v16, s[20:23], s37 offen")
    e("s_lshl_b32 s38, s2, 2")
    e(f"s_add_u32 s38, s38, {OFF_OVC}")
    e("v_cmp_eq_u32 vcc, 0, v0")
    e("s_and_saveexec_b64 s[40:41], vcc")
    e("s_cbranch_execz K1_S4")
    e("buffer_store_dword v56, v17, s[20:23], s38 offen")
    lab("K1_S4")
    e("s_mov_b64 exec, s[40:41]")
    lab("K1_S3")
    e("s_waitcnt lgkmcnt(2)")
    e("buffer_store_dwordx4 v[40:43], v16, s[20:23], s34 offen")
    e("s_waitcnt lgkmcnt(1)")
    e("buffer_store_dwordx4 v[44:47], v16, s[20:23], s35 offen")
    e("s_waitcnt lgkmcnt(0)")
    e("buffer_store_dwordx4 v[48:51], v16, s[20:23], s36 offen")
    e("s_endpgm")
    lab("K1_SLOW")
    e(f"s_mul_i32 s39, s2, {CH * 8}")
    e(f"s_add_u32 s39, s39, {OFF_OVF}")
    e("v_mov_b32 v17, 0")
    for j in range(4):
        e(f"v_cmp_gt_u32 vcc, 32, v{28+j}")
        e("s_and_saveexec_b64 s[40:41], vcc")
        e(f"ds_write_b32 v{36+j}, v{20+2*j}")
        e("s_andn2_b64 exec, s[40:41], exec")
        e(f"s_cbranch_execz K1_SL{j}")
        e("ds_add_rtn_u32 v16, v17, v18 offset:33792")
        e("s_waitcnt lgkmcnt(0)")
        e("v_lshlrev_b32 v16, 3, v16")
        e(f"buffer_store_dwordx2 v[{20+2*j}:{21+2*j}], v16, s[20:23], s39 offen")
        lab(f"K1_SL{j}")
        e("s_mov_b64 exec, s[40:41]")
    e("s_branch K1_S2")
    lab("K1_GEMM")
    e("s_sub_u32 s3, s2, 125")
    e("v_lshrrev_b32 v4, 4, v2")
    e("v_and_b32 v5, 15, v2")
    e("v_lshlrev_b32 v6, 1, v4")
    e("v_xor_b32 v6, v6, v5")
    e("v_lshlrev_b32 v6, 4, v6")
    e("v_lshl_add_u32 v6, v4, 8, v6")
    e("v_lshlrev_b32 v7, 4, v4")
    e("v_lshl_add_u32 v7, v5, 8, v7")
    e("s_waitcnt lgkmcnt(0)")
    e("s_cmp_ge_u32 s3, 126")
    e("s_cselect_b32 s24, s14, s12")
    e("s_cselect_b32 s25, s15, s13")
    e("s_mov_b32 s26, 65536")
    e("s_mov_b32 s27, 0x00020000")
    e("s_cmp_ge_u32 s3, 125")
    e("s_cselect_b32 s33, 1, 0")
    e("s_and_b32 s33, s33, s3")
    e("s_lshl_b32 s33, s33, 15")
    for k in range(4):
        if k == 3:
            e("s_cmp_ge_u32 s32, 2")
            e("s_cbranch_scc1 K1_G1")
        e(f"s_add_u32 s34, s32, {10 * k}")
        e("s_lshl_b32 s35, s34, 6")
        e("s_and_b32 s35, s35, 128")
        e(f"v_xor_b32 v{8+k}, s35, v6")
        e("s_lshl_b32 s34, s34, 10")
        e("s_mov_b32 m0, s34")
        e("s_add_u32 s34, s34, s33")
        e(f"buffer_load_dwordx4 v{8+k}, s[24:27], s34 offen lds")
    lab("K1_G1")
    srd(20, 16, 17, WS_SIZE)
    e("v_lshrrev_b32 v12, 2, v5")
    e("v_and_b32 v13, 3, v2")
    e("v_lshl_add_u32 v14, v4, 3, v12")
    e("v_lshlrev_b32 v14, 8, v14")
    e("v_lshl_add_u32 v14, v13, 3, v14")
    e("v_lshl_add_u32 v14, v12, 5, v14")
    e("v_and_b32 v15, 1, v4")
    e("v_lshl_add_u32 v14, v15, 7, v14")
    e("s_cmp_ge_u32 s3, 125")
    e("s_cbranch_scc1 K1_TR")
    srd(28, 4, 5, N * 256)
    e("s_cmp_ge_u32 s32, 5")
    e("s_cselect_b32 s36, 1, 0")
    e("s_mul_i32 s37, s36, 5")
    e("s_sub_u32 s37, s32, s37")
    e("s_mul_i32 s38, s3, 80")
    e("s_lshl_b32 s37, s37, 4")
    e("s_add_u32 s38, s38, s37")
    e("s_lshl_b32 s38, s38, 8")
    for s in range(4):
        e(f"buffer_load_dwordx4 v[{16+4*s}:{19+4*s}], v7, s[28:31], s38 offen offset:{64*s}")
    e("s_lshl_b32 s39, s36, 7")
    for ft in range(4):
        e(f"s_add_u32 s40, s39, {ft << 5}")
        e(f"v_xor_b32 v{32+ft}, s40, v14")
    e("s_waitcnt vmcnt(4)")
    e("s_barrier")
    for s in range(4):
        for ft in range(4):
            for v in range(2):
                b = 64 + (ft * 4 + s) * 4 + 2 * v
                e(f"ds_read_b64_tr_b16 v[{b}:{b+1}], v{32+ft} offset:{8192*s + 1024*v}")
    e("v_lshlrev_b32 v36, 3, v4")
    e("v_lshl_add_u32 v36, v5, 8, v36")
    e("s_add_u32 s38, s38, s39")
    e(f"s_mov_b32 s42, {hex(NLOG2E)}")
    e(f"s_mov_b32 s43, {hex(NLOG2E)}")
    e("s_waitcnt vmcnt(0)")
    for s in range(4):
        e(f"s_waitcnt lgkmcnt({min(15, 24 - 8 * s)})")
        for ft in range(4):
            b = 64 + (ft * 4 + s) * 4
            c = "0" if s == 0 else f"v[{40+4*ft}:{43+4*ft}]"
            e(f"v_mfma_f32_16x16x32_bf16 v[{40+4*ft}:{43+4*ft}], v[{b}:{b+3}], v[{16+4*s}:{19+4*s}], {c}")
    e("s_nop 7")
    for ft in range(4):
        a = 40 + 4 * ft
        e(f"v_pk_mul_f32 v[{a}:{a+1}], v[{a}:{a+1}], s[42:43]")
        e(f"v_pk_mul_f32 v[{a+2}:{a+3}], v[{a+2}:{a+3}], s[42:43]")
        e(f"v_cvt_pk_bf16_f32 v{a}, v{a}, v{a+1}")
        e(f"v_cvt_pk_bf16_f32 v{a+1}, v{a+2}, v{a+3}")
        e(f"buffer_store_dwordx2 v[{a}:{a+1}], v36, s[20:23], s38 offen offset:{32*ft}")
    e("s_endpgm")
    lab("K1_TR")
    e("s_lshl_b32 s40, s32, 5")
    e("v_xor_b32 v32, s40, v14")
    e("s_waitcnt vmcnt(0)")
    e("s_barrier")
    e("s_cmp_ge_u32 s32, 8")
    e("s_cbranch_scc1 K1_END")
    for s in range(4):
        for v in range(2):
            b = 64 + s * 4 + 2 * v
            e(f"ds_read_b64_tr_b16 v[{b}:{b+1}], v32 offset:{8192*s + 1024*v}")
    e("s_sub_u32 s38, s3, 125")
    e("s_lshl_b32 s38, s38, 15")
    e("s_lshl_b32 s39, s32, 12")
    e("s_add_u32 s38, s38, s39")
    e(f"s_add_u32 s38, s38, {OFF_WF}")
    e("v_lshlrev_b32 v36, 4, v2")
    e("s_waitcnt lgkmcnt(0)")
    for s in range(4):
        b = 64 + s * 4
        e(f"buffer_store_dwordx4 v[{b}:{b+3}], v36, s[20:23], s38 offen offset:{1024*s}")
    lab("K1_END")
    e("s_endpgm")

LIST_N = 2048 + 96
QN_N = 512 + 96
L_IDX = 0
L_EO = L_IDX + LIST_N * 4
L_QN = L_EO + LIST_N * 4
L_CNT = L_QN + QN_N * 4
L_Q = L_CNT + 256
L_AGG = L_Q + 48 * 320
L_STAGE = (L_AGG + 40960 + 255) // 256 * 256
L_END = L_STAGE + 65536
assert L_END <= K2_LDS, L_END

Z = [32, 64]
PB = 96
QB = [112, 116]
AE = [120, 124]
ASEL = 128
OH = 136
IDX = 138
TE = 146; TD = 154; TN = 158
ACC = 162
U = 166
WU2 = 178
vPT = [194, 195]
vLi, vLe, vLq, vQc, vq, vEo, vMask, vNode, vL8, vFa = 196, 197, 198, 199, 200, 201, 202, 203, 204, 205
vF = 206
vQn = 210
vLane = 1
REC = 2
EB = 10
RANK = 12
W3R = 212
vOv = 220
K2_VGPR = 224

SP, SE, SW, SX, SO, SM = 8, 12, 16, 20, 24, 28
sWave, sN0, sNc, sStage = 32, 33, 34, 35
sMask = 36; sQi = 38; sRem = 39; sC = 40; sEx = 42
sOv0 = 48; sOv1 = 50; sPhase = 52; sOvG = 53; sOvC = 54; sOvS = 55; sQt = 56; sQ0 = 57; sNq = 58; sFirst = 59

def silu_quad(zb, j, extra=()):
    a = zb + 4 * j
    b = zb + 16 + 4 * j
    seq = []
    for i in range(4): seq.append(f"v_exp_f32 v{TE+i}, v{a+i}")
    for i in range(4): seq.append(f"v_exp_f32 v{TE+4+i}, v{b+i}")
    for i in range(4):
        seq.append(f"v_pk_fma_f32 v[{TE+2*i}:{TE+2*i+1}], v[{TE+2*i}:{TE+2*i+1}], s[{sC}:{sC+1}], s[{sC}:{sC+1}] clamp")
    seq.append(f"v_pk_mul_f32 v[{TD}:{TD+1}], v[{TE}:{TE+1}], v[{TE+2}:{TE+3}]")
    seq.append(f"v_pk_mul_f32 v[{TD+2}:{TD+3}], v[{TE+4}:{TE+5}], v[{TE+6}:{TE+7}]")
    seq.append(f"v_pk_mul_f32 v[{TN}:{TN+1}], v[{a}:{a+1}], v[{TE+2}:{TE+3}]")
    seq.append(f"v_pk_mul_f32 v[{TN+2}:{TN+3}], v[{b}:{b+1}], v[{TE+6}:{TE+7}]")
    for i in range(4): seq.append(f"v_rcp_f32 v{TD+i}, v{TD+i}")
    seq.append(f"v_pk_fma_f32 v[{TN}:{TN+1}], v[{a+2}:{a+3}], v[{TE}:{TE+1}], v[{TN}:{TN+1}]")
    seq.append(f"v_pk_fma_f32 v[{TN+2}:{TN+3}], v[{b+2}:{b+3}], v[{TE+4}:{TE+5}], v[{TN+2}:{TN+3}]")
    seq.append(f"v_pk_fma_f32 v[{ACC}:{ACC+1}], v[{TN}:{TN+1}], v[{TD}:{TD+1}], v[{ACC}:{ACC+1}]")
    seq.append(f"v_pk_fma_f32 v[{ACC+2}:{ACC+3}], v[{TN+2}:{TN+3}], v[{TD+2}:{TD+3}], v[{ACC+2}:{ACC+3}]")
    extra = list(extra)
    n = len(seq)
    pos = {}
    for k, x in enumerate(extra):
        p = (k + 1) * n // (len(extra) + 1)
        pos.setdefault(p, []).append(x)
    for i, s in enumerate(seq):
        for x in pos.get(i, []):
            for y in x: e(y)
        e(s)

def T_reads(stg):
    r = []
    for p in range(2):
        for u in range(2):
            for v in range(2):
                b = PB + (p * 2 + u) * 4 + 2 * v
                r.append(f"ds_read_b64_tr_b16 v[{b}:{b+1}], v{vPT[p]} offset:{stg*4096 + (2*u+v)*1024}")
    for p in range(2):
        r.append(f"ds_read_b64_tr_b16 v[{QB[p]+2}:{QB[p]+3}], v{vq} offset:{128*p}")
    return r

def M_ops(zb, ae):
    r = []
    for p in range(2):
        d = vr(zb + 16 * p, 16)
        r.append(f"v_mfma_f32_32x32x16_bf16 {d}, {vr(ae,4)}, {vr(QB[p],4)}, 0")
    for u in range(2):
        for p in range(2):
            d = vr(zb + 16 * p, 16)
            r.append(f"v_mfma_f32_32x32x16_bf16 {d}, {vr(ASEL+4*u,4)}, {vr(PB+(p*2+u)*4,4)}, {d}")
    return r

def G_guard():
    return [f"s_cmp_gt_i32 s{sRem}, 0",
            f"s_cselect_b32 s{SP+2}, {N}, 0",
            f"s_cselect_b32 s{SE+2}, {E*8}, 0",
            f"s_sub_u32 s{sRem}, s{sRem}, 1"]

def G_op(stg, q):
    return [f"s_add_u32 m0, s{sStage}, {stg*4096 + q*1024}",
            "s_nop 0",
            f"buffer_load_dwordx4 v[{IDX+2*q}:{IDX+2*q+1}], s[{SP}:{SP+3}], 0 idxen offen lds"]

def E_op(ae):
    return [f"s_mov_b64 exec, s[{sEx}:{sEx+1}]",
            f"buffer_load_dwordx2 v[{ae}:{ae+1}], v{vEo}, s[{SE}:{SE+3}], 0 offen",
            "s_mov_b64 exec, -1"]

def mask_ops(ae):
    return [f"v_ashrrev_i32 v{vMask}, 31, v{vEo}",
            f"v_bfi_b32 v{ae+2}, v{vMask}, 0, v{OH}",
            f"v_bfi_b32 v{ae+3}, v{vMask}, 0, v{OH+1}"]

def vq_op():
    return [f"v_mad_u32_u24 v{vq}, v{vQn}, s44, v{vQc}"]

def list_reads(step, qstep):
    r = [f"ds_read_b32 v{IDX+2*q}, v{vLi} offset:{step*64 + 16*q}" for q in range(4)]
    r.append(f"ds_read_b32 v{vEo}, v{vLe} offset:{step*64}")
    if qstep is not None:
        r.append(f"ds_read_b32 v{vQn}, v{vLq} offset:{qstep*16}")
    return r

def fcheck(site):
    e(f"s_bitcmp1_b64 s[{sMask}:{sMask+1}], {site}")
    e(f"s_cbranch_scc1 K2_FL{site}")
    lab(f"K2_RT{site}")

def lists_init():
    e("v_lshlrev_b32 v20, 4, v0")
    for i in range(4): e(f"v_mov_b32 v{24+i}, -1")
    e(f"ds_write_b128 v20, v[24:27] offset:{L_IDX}")
    e("v_cmp_gt_u32 vcc, 24, v0")
    e("s_and_saveexec_b64 s[46:47], vcc")
    e(f"ds_write_b128 v20, v[24:27] offset:{L_IDX + 8192}")
    e("s_mov_b64 exec, s[46:47]")
    for i in range(4): e(f"v_mov_b32 v{24+i}, 0x80000000")
    e(f"ds_write_b128 v20, v[24:27] offset:{L_EO}")
    e("s_and_saveexec_b64 s[46:47], vcc")
    e(f"ds_write_b128 v20, v[24:27] offset:{L_EO + 8192}")
    e("s_mov_b64 exec, s[46:47]")
    for i in range(4): e(f"v_mov_b32 v{24+i}, 0")
    e("v_cmp_gt_u32 vcc, 168, v0")
    e("s_and_saveexec_b64 s[46:47], vcc")
    e(f"ds_write_b128 v20, v[24:27] offset:{L_QN}")
    e("s_mov_b64 exec, s[46:47]")

def load_slots():
    e("v_lshlrev_b32 v20, 4, v0")
    e("s_mul_i32 s45, s2, 16000")
    e(f"s_add_u32 s45, s45, {OFF_SLOT}")
    for i in range(4): e(f"v_mov_b32 v{REC+4+i}, -1")
    e(f"buffer_load_dwordx4 v[{REC}:{REC+3}], v20, s[{SW}:{SW+3}], s45 offen")
    e("s_add_u32 s45, s45, 8192")
    e("v_cmp_gt_u32 vcc, 488, v0")
    e("s_and_saveexec_b64 s[46:47], vcc")
    e(f"buffer_load_dwordx4 v[{REC+4}:{REC+7}], v20, s[{SW}:{SW+3}], s45 offen")
    e("s_mov_b64 exec, s[46:47]")
    e(f"v_lshrrev_b32 v{EB}, 3, v0")
    e(f"v_mul_u32_u24 v{EB}, {CH*8}, v{EB}")
    e(f"v_add_u32 v{EB+1}, {64*CH*8}, v{EB}")

def gen_k2():
    begin(K2)
    e(f"s_cmp_ge_u32 s2, {T}")
    e("s_cbranch_scc1 K2_END")
    e("s_load_dwordx4 s[60:63], s[0:1], 0")
    e("s_load_dwordx2 s[64:65], s[0:1], 32")
    e("s_load_dwordx2 s[66:67], s[0:1], 48")
    e("s_load_dwordx2 s[68:69], s[0:1], 64")
    e(f"v_and_b32 v{vLane}, 63, v0")
    e("v_lshrrev_b32 v20, 6, v0")
    e("s_mul_i32 s33, s2, 625")
    e(f"v_readfirstlane_b32 s{sWave}, v20")
    e("s_add_u32 s34, s33, 625")
    e(f"s_lshr_b32 s{sN0}, s33, 4")
    e("s_lshr_b32 s34, s34, 4")
    e(f"s_sub_u32 s{sNc}, s34, s{sN0}")
    e(f"s_lshl_b32 s{sStage}, s{sWave}, 13")
    e(f"s_add_u32 s{sStage}, s{sStage}, {L_STAGE}")
    e(f"v_lshrrev_b32 v28, 4, v{vLane}")
    e(f"v_and_b32 v29, 15, v{vLane}")
    e("s_waitcnt lgkmcnt(0)")
    srd(SW, 68, 69, WS_SIZE)
    load_slots()
    e(f"v_lshlrev_b32 v21, 2, v{vLane}")
    e(f"s_mov_b32 s45, {OFF_OVC}")
    e(f"v_mov_b32 v{vOv+1}, 0")
    e(f"buffer_load_dword v{vOv}, v21, s[{SW}:{SW+3}], s45 offen")
    e(f"v_cmp_gt_u32 vcc, 61, v{vLane}")
    e("s_and_saveexec_b64 s[46:47], vcc")
    e(f"buffer_load_dword v{vOv+1}, v21, s[{SW}:{SW+3}], s45 offen offset:256")
    e("s_mov_b64 exec, s[46:47]")
    e(f"v_lshlrev_b32 v22, 4, v{vLane}")
    e(f"s_lshl_b32 s45, s{sWave}, 12")
    e(f"s_add_u32 s45, s45, {OFF_WF}")
    for s in range(4):
        e(f"buffer_load_dwordx4 v[{80+4*s}:{83+4*s}], v22, s[{SW}:{SW+3}], s45 offen offset:{1024*s}")
    srd(SX, 60, 61, N * 256)
    e("v_lshlrev_b32 v23, 4, v28")
    e("v_lshl_add_u32 v23, v29, 8, v23")
    e(f"s_lshl_b32 s46, s{sN0}, 8")
    for nt in range(3):
        for s in range(4):
            b = 32 + (nt * 4 + s) * 4
            e(f"buffer_load_dwordx4 v[{b}:{b+3}], v23, s[{SX}:{SX+3}], s46 offen offset:{64*s}")
        if nt < 2:
            e("s_add_u32 s46, s46, 4096")
    srd(SM, 64, 65, 260 * 256)
    e(f"v_lshlrev_b32 v21, 1, v{vLane}")
    e("s_mov_b32 s46, 65536")
    for p in range(2):
        for c in range(4):
            e(f"buffer_load_ushort v{W3R+4*p+c}, v21, s[{SM}:{SM+3}], s46 offen offset:{256*c + 128*p}")
    e("s_add_u32 s45, s45, 32768")
    for s in range(4):
        e(f"buffer_load_dwordx4 v[{96+4*s}:{99+4*s}], v22, s[{SW}:{SW+3}], s45 offen offset:{1024*s}")
    e("s_add_u32 s45, s45, 32768")
    for s in range(4):
        e(f"buffer_load_dwordx4 v[{WU2+4*s}:{WU2+3+4*s}], v22, s[{SW}:{SW+3}], s45 offen offset:{1024*s}")
    NEWER = 4 + 12 + 8 + 4 + 4
    srd(SP, 68, 69, N, stride=256)
    srd(SE, 62, 63, E * 8)
    srd(SO, 66, 67, N * 256)
    lists_init()
    e(f"v_add_u32 v20, {L_AGG}, v20")
    for k in range(5):
        e(f"ds_write_b128 v20, v[24:27] offset:{8192*k}")
    e(f"s_mov_b32 s{sC}, {hex(CSC)}")
    e(f"s_mov_b32 s{sC+1}, {hex(CSC)}")
    e(f"s_mov_b32 s{sEx}, 0x0f0f0f0f")
    e(f"s_mov_b32 s{sEx+1}, 0xf0f0f0f0")
    e("s_mov_b32 s44, 320")
    e(f"s_mov_b32 s{sPhase}, 0")
    e(f"s_mov_b32 s{sFirst}, 1")
    e("v_lshrrev_b32 v30, 2, v29")
    e(f"v_and_b32 v31, 3, v{vLane}")
    e("v_lshlrev_b32 v21, 2, v28")
    e("v_xor_b32 v21, v21, v29")
    e("v_lshlrev_b32 v21, 4, v21")
    for q in range(4): e(f"v_mov_b32 v{IDX+2*q+1}, v21")
    e("v_lshlrev_b32 v21, 1, v28")
    e("v_lshlrev_b32 v22, 2, v30")
    e("v_xor_b32 v21, v21, v22")
    e("v_lshlrev_b32 v21, 4, v21")
    e("v_lshl_add_u32 v21, v30, 8, v21")
    e("v_lshl_add_u32 v21, v31, 3, v21")
    e(f"v_add_u32 v{vPT[0]}, s{sStage}, v21")
    e(f"v_xor_b32 v{vPT[1]}, 128, v{vPT[0]}")
    e("v_lshlrev_b32 v21, 5, v28")
    e("v_lshl_add_u32 v21, v31, 3, v21")
    e(f"v_add_u32 v{vQc}, {L_Q}, v21")
    e(f"v_lshlrev_b32 v{vL8}, 3, v{vLane}")
    e(f"v_and_b32 v21, 31, v{vLane}")
    e("v_lshrrev_b32 v22, 3, v21")
    e("v_lshl_add_u32 v23, v22, 2, v31")
    e("v_mov_b32 v24, 0x3f80")
    e("v_and_b32 v25, 1, v23")
    e("v_lshlrev_b32 v25, 4, v25")
    e("v_lshlrev_b32 v25, v25, v24")
    e("v_lshrrev_b32 v26, 1, v23")
    e("v_and_b32 v27, 1, v22")
    e("v_lshlrev_b32 v27, 4, v27")
    e("v_lshlrev_b32 v27, v27, v24")
    e("v_lshrrev_b32 v22, 1, v22")
    for i in range(8): e(f"v_mov_b32 v{ASEL+i}, 0")
    for i in range(2): e(f"v_mov_b32 v{OH+i}, 0")
    for i in range(8): e(f"v_mov_b32 v{AE[0]+i}, 0")
    for i in range(4): e(f"v_mov_b32 v{ACC+i}, 0")
    for i in range(8):
        e(f"v_cmp_eq_u32 vcc, {i}, v26")
        e(f"s_and_b64 exec, vcc, s[{sEx}:{sEx+1}]")
        e(f"v_mov_b32 v{ASEL+i}, v25")
        e("s_mov_b64 exec, -1")
    for i in range(2):
        e(f"v_cmp_eq_u32 vcc, {i}, v22")
        e(f"s_and_b64 exec, vcc, s[{sEx}:{sEx+1}]")
        e(f"v_mov_b32 v{OH+i}, v27")
        e("s_mov_b64 exec, -1")
    e("v_lshlrev_b32 v31, 2, v23")
    e("v_lshlrev_b32 v30, 2, v30")
    e("v_lshlrev_b32 v28, 2, v28")
    e(f"s_waitcnt vmcnt({NEWER}) lgkmcnt(0)")
    e(f"v_cmp_ne_u32 s[{sOv0}:{sOv0+1}], 0, v{vOv}")
    e(f"v_cmp_ne_u32 s[{sOv1}:{sOv1+1}], 0, v{vOv+1}")
    lab("K2_ROUND")
    e("s_barrier")
    e("v_mov_b32 v20, 1")
    for j in range(8):
        e(f"v_cmp_ne_u32 vcc, -1, v{REC+j}")
        e(f"v_bfe_u32 v21, v{REC+j}, 14, 6")
        e("v_lshlrev_b32 v21, 2, v21")
        e("s_mov_b64 exec, vcc")
        e(f"ds_add_rtn_u32 v{RANK+j}, v21, v20 offset:{L_CNT}")
        e("s_mov_b64 exec, -1")
    e(f"v_lshlrev_b32 v21, 2, v{vLane}")
    e("s_waitcnt lgkmcnt(0)")
    e("s_barrier")
    e(f"ds_read_b32 v22, v21 offset:{L_CNT}")
    e("s_waitcnt lgkmcnt(0)")
    e("v_add_u32 v22, 3, v22")
    e("v_lshrrev_b32 v22, 2, v22")
    e("v_mov_b32 v23, v22")
    e("s_nop 1")
    for sh in (1, 2, 4, 8):
        e(f"v_add_u32_dpp v23, v23, v23 row_shr:{sh} row_mask:0xf bank_mask:0xf bound_ctrl:0")
        e("s_nop 1")
    e("v_add_u32_dpp v23, v23, v23 row_bcast:15 row_mask:0xa bank_mask:0xf")
    e("s_nop 1")
    e("v_add_u32_dpp v23, v23, v23 row_bcast:31 row_mask:0xc bank_mask:0xf")
    e("s_nop 1")
    e(f"v_readlane_b32 s{sQt}, v23, 63")
    e("v_sub_u32 v23, v23, v22")
    e("v_lshlrev_b32 v23, 2, v23")
    e("s_nop 1")
    e(f"s_cmp_gt_u32 s{sQt}, 512")
    e("s_cbranch_scc1 K2_SPLIT")
    for j in range(8):
        e(f"v_bfe_u32 v{TE+8+j}, v{REC+j}, 14, 6")
        e(f"v_lshlrev_b32 v21, 2, v{TE+8+j}")
        e(f"ds_bpermute_b32 v{TE+j}, v21, v23")
    e("s_waitcnt lgkmcnt(0)")
    for j in range(8):
        e(f"v_cmp_ne_u32 vcc, -1, v{REC+j}")
        e(f"v_add_lshl_u32 v21, v{TE+j}, v{RANK+j}, 2")
        e(f"v_and_b32 v22, 0x3fff, v{REC+j}")
        e(f"v_lshrrev_b32 v24, 20, v{REC+j}")
        e(f"v_lshl_add_u32 v24, v24, 3, v{EB + j//4}")
        e(f"v_and_b32 v25, 3, v{RANK+j}")
        e(f"v_lshrrev_b32 v26, 2, v21")
        e("v_cmp_eq_u32 s[46:47], 0, v25")
        e("s_mov_b64 exec, vcc")
        e(f"ds_write_b32 v21, v22 offset:{L_IDX}")
        e(f"ds_write_b32 v21, v24 offset:{L_EO}")
        e("s_and_b64 exec, vcc, s[46:47]")
        e(f"ds_write_b32 v26, v{TE+8+j} offset:{L_QN}")
        e("s_mov_b64 exec, -1")
    e(f"s_mul_i32 s{sQ0}, s{sQt}, s{sWave}")
    e(f"s_add_u32 s{sNq}, s{sQ0}, s{sQt}")
    e(f"s_lshr_b32 s{sQ0}, s{sQ0}, 3")
    e(f"s_lshr_b32 s{sNq}, s{sNq}, 3")
    e(f"s_sub_u32 s{sNq}, s{sNq}, s{sQ0}")
    e(f"s_add_u32 s{sRem}, s{sNq}, 3")
    e(f"s_lshr_b32 s{sRem}, s{sRem}, 2")
    e(f"s_lshl_b32 s45, s{sQ0}, 4")
    e(f"s_add_u32 s46, s45, {L_IDX}")
    e(f"v_add_u32 v{vLi}, s46, v28")
    e(f"s_add_u32 s46, s45, {L_EO}")
    e(f"v_add_u32 v{vLe}, s46, v31")
    e(f"s_lshl_b32 s45, s{sQ0}, 2")
    e(f"s_add_u32 s46, s45, {L_QN}")
    e(f"v_add_u32 v{vLq}, s46, v30")
    e(f"v_lshl_add_u32 v21, v{vLane}, 2, s46")
    e("s_waitcnt lgkmcnt(0)")
    e("s_barrier")
    for x in list_reads(0, 0): e(x)
    e("ds_read2_b32 v[22:23], v21 offset0:0 offset1:1")
    e("s_waitcnt lgkmcnt(1)")
    for x in G_guard(): e(x)
    for q in range(4):
        for x in G_op(0, q): e(x)
    for x in E_op(AE[0]): e(x)
    for x in mask_ops(AE[0]) + vq_op(): e(x)
    for x in list_reads(1, None): e(x)
    e("s_waitcnt lgkmcnt(5)")
    e(f"v_cmp_ne_u32 s[{sMask}:{sMask+1}], v22, v23")
    e(f"v_cmp_gt_u32 vcc, s{sNq}, v{vLane}")
    e(f"v_lshlrev_b32 v{vNode}, 10, v22")
    e(f"v_add_u32 v{vNode}, {L_AGG}, v{vNode}")
    e(f"s_and_b64 s[{sMask}:{sMask+1}], s[{sMask}:{sMask+1}], vcc")
    e(f"s_sub_u32 s45, s{sNq}, 1")
    e(f"s_bitset1_b64 s[{sMask}:{sMask+1}], s45")
    e(f"s_mov_b32 s{sQi}, 0")
    e("s_waitcnt lgkmcnt(0)")
    for x in G_guard(): e(x)
    for q in range(4):
        for x in G_op(1, q): e(x)
    for x in E_op(AE[1]): e(x)
    for x in mask_ops(AE[1]): e(x)
    for x in list_reads(2, 1): e(x)
    e(f"s_cmp_eq_u32 s{sFirst}, 0")
    e("s_cbranch_scc1 K2_NOQ")
    e(f"s_mov_b32 s{sFirst}, 0")
    e(f"s_mov_b32 s46, {hex(NLOG2E)}")
    e(f"s_mov_b32 s47, {hex(NLOG2E)}")
    e("s_waitcnt vmcnt(10)")
    for s in range(4):
        for nt in range(3):
            b = 32 + (nt * 4 + s) * 4
            d = vr(TE + 4 * nt, 4)
            c = "0" if s == 0 else d
            e(f"v_mfma_f32_16x16x32_bf16 {d}, v[{80+4*s}:{83+4*s}], v[{b}:{b+3}], {c}")
    for s in range(4):
        for nt in range(3):
            b = 32 + (nt * 4 + s) * 4
            d = vr(U + 4 * nt, 4)
            c = "0" if s == 0 else d
            e(f"v_mfma_f32_16x16x32_bf16 {d}, v[{96+4*s}:{99+4*s}], v[{b}:{b+3}], {c}")
    for p in range(2):
        for c in range(4):
            r = W3R + 4 * p + c
            e(f"v_lshlrev_b32 v{r}, 16, v{r}")
            e(f"v_mul_f32 v{r}, s46, v{r}")
        e(f"v_cvt_pk_bf16_f32 v{QB[p]}, v{W3R+4*p}, v{W3R+4*p+1}")
        e(f"v_cvt_pk_bf16_f32 v{QB[p]+1}, v{W3R+4*p+2}, v{W3R+4*p+3}")
    e("v_mul_u32_u24 v21, 320, v29")
    e("v_lshl_add_u32 v21, v28, 1, v21")
    e(f"s_lshl_b32 s45, s{sWave}, 5")
    e(f"s_add_u32 s45, s45, {L_Q}")
    e("v_add_u32 v21, s45, v21")
    for nt in range(3):
        a = TE + 4 * nt
        e(f"v_pk_mul_f32 v[{a}:{a+1}], v[{a}:{a+1}], s[46:47]")
        e(f"v_pk_mul_f32 v[{a+2}:{a+3}], v[{a+2}:{a+3}], s[46:47]")
        e(f"v_cvt_pk_bf16_f32 v{a}, v{a}, v{a+1}")
        e(f"v_cvt_pk_bf16_f32 v{a+1}, v{a+2}, v{a+3}")
        e(f"ds_write_b64 v21, v[{a}:{a+1}] offset:{5120*nt}")
    e("s_waitcnt lgkmcnt(0)")
    e("s_barrier")
    lab("K2_NOQ")
    e(f"s_cmp_eq_u32 s{sNq}, 0")
    e("s_cbranch_scc1 K2_REND")
    e("s_waitcnt vmcnt(5)")
    for x in T_reads(0): e(x)
    e("s_waitcnt lgkmcnt(0)")
    for x in M_ops(Z[0], AE[0]): e(x)
    for x in G_guard(): e(x)
    for q in range(4):
        for x in G_op(0, q): e(x)
    for x in E_op(AE[0]): e(x)
    for x in mask_ops(AE[0]) + vq_op(): e(x)
    for x in list_reads(3, 2): e(x)
    e(".p2align 6")
    lab("K2_LOOP")
    for X in range(2):
        Y = 1 - X
        e("s_waitcnt vmcnt(5)")
        for x in T_reads(Y): e(x)
        silu_quad(Z[X], 0)
        fcheck(4 * X + 0)
        e("s_waitcnt lgkmcnt(0)")
        for x in G_guard(): e(x)
        m = M_ops(Z[Y], AE[Y])
        ex = [[m[0]], [m[1]], G_op(Y, 0), [m[2]], G_op(Y, 1), [m[3]], G_op(Y, 2), [m[4]], G_op(Y, 3), [m[5]]]
        silu_quad(Z[X], 1, ex)
        fcheck(4 * X + 1)
        mo = mask_ops(AE[Y])
        silu_quad(Z[X], 2, [E_op(AE[Y]), mo[:1], mo[1:2], mo[2:3], vq_op(), list_reads(4 + X, 3 + X)])
        fcheck(4 * X + 2)
        if X == 1:
            adv = [[f"v_add_u32 v{vLi}, 128, v{vLi}"], [f"v_add_u32 v{vLe}, 128, v{vLe}"], [f"v_add_u32 v{vLq}, 32, v{vLq}"]]
        else:
            adv = []
        silu_quad(Z[X], 3, adv)
        fcheck(4 * X + 3)
    e(f"s_lshr_b64 s[{sMask}:{sMask+1}], s[{sMask}:{sMask+1}], 8")
    e(f"s_add_u32 s{sQi}, s{sQi}, 8")
    e("s_branch K2_LOOP")
    for site in range(8):
        lab(f"K2_FL{site}")
        e(f"s_add_u32 s45, s{sQi}, {site}")
        e(f"v_add_f32 v{vF}, v{ACC}, v{ACC+1}")
        e(f"v_add_f32 v{vF+2}, v{ACC+2}, v{ACC+3}")
        e(f"v_readlane_b32 s45, v{vNode}, s45")
        e(f"v_cvt_f64_f32 v[{vF}:{vF+1}], v{vF}")
        e(f"v_cvt_f64_f32 v[{vF+2}:{vF+3}], v{vF+2}")
        e(f"v_add_u32 v{vFa}, s45, v{vL8}")
        e(f"v_mov_b32 v{ACC}, 0")
        e(f"v_mov_b32 v{ACC+1}, 0")
        e(f"ds_add_f64 v{vFa}, v[{vF}:{vF+1}]")
        e(f"ds_add_f64 v{vFa}, v[{vF+2}:{vF+3}] offset:512")
        e(f"v_mov_b32 v{ACC+2}, 0")
        e(f"v_mov_b32 v{ACC+3}, 0")
        e(f"s_lshr_b64 s[46:47], s[{sMask}:{sMask+1}], {site+1}")
        e(f"s_cbranch_scc1 K2_RT{site}")
        if site < 7:
            e("s_branch K2_REND")
    lab("K2_REND")
    e("s_waitcnt vmcnt(0) lgkmcnt(0)")
    e("s_barrier")
    e(f"s_cmp_eq_u32 s{sPhase}, 0")
    e("s_cbranch_scc0 K2_NEXT")
    e(f"s_or_b64 s[46:47], s[{sOv0}:{sOv0+1}], s[{sOv1}:{sOv1+1}]")
    e("s_cbranch_scc1 K2_OVSTART")
    lab("K2_EPI")
    e(f"v_lshlrev_b32 v20, 4, v0")
    e(f"v_add_u32 v20, {L_AGG}, v20")
    for k in range(5):
        e(f"ds_read_b128 v[{32+4*k}:{35+4*k}], v20 offset:{8192*k}")
    e(f"s_mul_i32 s45, s{sWave}, 272")
    e(f"s_add_u32 s45, s45, {L_Q}")
    e(f"v_lshl_add_u32 v21, v{vLane}, 2, s45")
    e(f"s_mov_b32 s46, {hex(FSC)}")
    e(f"s_mov_b32 s47, {hex(FSC)}")
    e("v_mul_u32_u24 v22, 272, v29")
    e("v_lshl_add_u32 v22, v28, 2, v22")
    e(f"v_add_u32 v22, {L_Q}, v22")
    for k in range(5):
        b = 32 + 4 * k
        e(f"s_waitcnt lgkmcnt({4-k if k < 4 else 4})" if False else f"s_waitcnt lgkmcnt(4)")
        e(f"v_cvt_f32_f64 v{b}, v[{b}:{b+1}]")
        e(f"v_cvt_f32_f64 v{b+1}, v[{b+2}:{b+3}]")
        e(f"v_pk_mul_f32 v[{b}:{b+1}], v[{b}:{b+1}], s[46:47]")
        e(f"v_cvt_pk_bf16_f32 v{b}, v{b}, v{b+1}")
        e(f"ds_write_b32 v21, v{b} offset:{8*272*k}")
    e("s_waitcnt lgkmcnt(0)")
    e("s_barrier")
    for s in range(4):
        for nt in range(3):
            b = 32 + (nt * 4 + s) * 4
            e(f"ds_read_b128 v[{b}:{b+3}], v22 offset:{16*272*nt + 64*s}")
    e("v_lshlrev_b32 v23, 8, v29")
    e("v_lshl_add_u32 v23, v28, 1, v23")
    e(f"s_lshl_b32 s45, s{sN0}, 8")
    e(f"s_lshl_b32 s46, s{sWave}, 5")
    e("s_add_u32 s45, s45, s46")
    e(f"s_mov_b32 s46, {hex(NLOG2E)}")
    for s in range(4):
        e(f"s_waitcnt lgkmcnt({9 - 3*s})")
        for nt in range(3):
            b = 32 + (nt * 4 + s) * 4
            d = vr(U + 4 * nt, 4)
            e(f"v_mfma_f32_16x16x32_bf16 {d}, v[{WU2+4*s}:{WU2+3+4*s}], v[{b}:{b+3}], {d}")
    e(f"s_sub_u32 s47, s{sNc}, 32")
    e(f"v_cmp_gt_u32 vcc, s47, v29")
    e("s_nop 6")
    for i in range(12): e(f"v_mul_f32 v{32+i}, s46, v{U+i}")
    for i in range(12): e(f"v_exp_f32 v{32+i}, v{32+i}")
    for i in range(12): e(f"v_add_f32 v{32+i}, 1.0, v{32+i}")
    for i in range(12): e(f"v_rcp_f32 v{32+i}, v{32+i}")
    for i in range(12): e(f"v_mul_f32 v{32+i}, v{32+i}, v{U+i}")
    for nt in range(3):
        a = 32 + 4 * nt
        e(f"v_cvt_pk_bf16_f32 v{a}, v{a}, v{a+1}")
        e(f"v_cvt_pk_bf16_f32 v{a+1}, v{a+2}, v{a+3}")
        if nt == 2:
            e("s_mov_b64 exec, vcc")
        e(f"buffer_store_dwordx2 v[{a}:{a+1}], v23, s[{SO}:{SO+3}], s45 offen")
        if nt < 2:
            e("s_add_u32 s45, s45, 4096")
    lab("K2_END")
    e("s_endpgm")
    lab("K2_SPLIT")
    e(f"s_mov_b32 s{sPhase}, 0")
    e("s_barrier")
    e("s_branch K2_PAIR")
    lab("K2_NEXT")
    e(f"s_cmp_ge_u32 s{sPhase}, 4")
    e("s_cbranch_scc1 K2_OVNEXT")
    lab("K2_PAIR")
    e(f"s_add_u32 s{sPhase}, s{sPhase}, 1")
    load_slots()
    lists_init()
    e("s_waitcnt vmcnt(0)")
    for k in range(4):
        e(f"s_cmp_eq_u32 s{sPhase}, {k+1}")
        e(f"s_cbranch_scc1 K2_PK{k}")
        e(f"v_mov_b32 v{REC+2*k}, -1")
        e(f"v_mov_b32 v{REC+2*k+1}, -1")
        lab(f"K2_PK{k}")
    e("s_waitcnt lgkmcnt(0)")
    e("s_branch K2_ROUND")
    lab("K2_OVSTART")
    e(f"s_mov_b32 s{sPhase}, 4")
    lab("K2_OVNEXT")
    e(f"s_cmp_eq_u32 s{sPhase}, 4")
    e("s_cbranch_scc1 K2_OVPICK")
    e(f"s_add_u32 s{sOvS}, s{sOvS}, 1024")
    e(f"s_cmp_lt_u32 s{sOvS}, s{sOvC}")
    e("s_cbranch_scc1 K2_OVLOAD")
    lab("K2_OVPICK")
    e(f"s_mov_b32 s{sPhase}, 5")
    e(f"s_mov_b32 s{sOvS}, 0")
    e(f"s_cmp_lg_u64 s[{sOv0}:{sOv0+1}], 0")
    e("s_cbranch_scc0 K2_OVP1")
    e(f"s_ff1_i32_b64 s{sOvG}, s[{sOv0}:{sOv0+1}]")
    e(f"s_bitset0_b64 s[{sOv0}:{sOv0+1}], s{sOvG}")
    e(f"v_readlane_b32 s{sOvC}, v{vOv}, s{sOvG}")
    e("s_branch K2_OVLOAD")
    lab("K2_OVP1")
    e(f"s_cmp_lg_u64 s[{sOv1}:{sOv1+1}], 0")
    e("s_cbranch_scc0 K2_EPI")
    e(f"s_ff1_i32_b64 s{sOvG}, s[{sOv1}:{sOv1+1}]")
    e(f"s_bitset0_b64 s[{sOv1}:{sOv1+1}], s{sOvG}")
    e(f"v_readlane_b32 s{sOvC}, v{vOv+1}, s{sOvG}")
    e(f"s_add_u32 s{sOvG}, s{sOvG}, 64")
    lab("K2_OVLOAD")
    e(f"s_mul_i32 s45, s{sOvG}, {CH*8}")
    e(f"v_mov_b32 v{EB}, s45")
    e(f"s_lshl_b32 s46, s{sOvS}, 3")
    e("s_add_u32 s45, s45, s46")
    e(f"s_add_u32 s45, s45, {OFF_OVF}")
    e("v_lshlrev_b32 v20, 4, v0")
    e(f"buffer_load_dwordx4 v[{REC}:{REC+3}], v20, s[{SW}:{SW+3}], s45 offen")
    lists_init()
    e(f"v_lshl_add_u32 v21, v0, 1, s{sOvS}")
    e("v_add_u32 v22, 1, v21")
    e("s_waitcnt vmcnt(0)")
    e(f"v_cmp_gt_u32 vcc, s{sOvC}, v21")
    e(f"v_cmp_eq_u32 s[46:47], s2, v{REC+1}")
    e("s_and_b64 vcc, vcc, s[46:47]")
    e("v_mov_b32 v23, -1")
    e(f"v_cndmask_b32 v{REC}, v23, v{REC}, vcc")
    e(f"v_cmp_gt_u32 vcc, s{sOvC}, v22")
    e(f"v_cmp_eq_u32 s[46:47], s2, v{REC+3}")
    e("s_and_b64 vcc, vcc, s[46:47]")
    e("s_nop 1")
    e(f"v_cndmask_b32 v{REC+1}, v23, v{REC+2}, vcc")
    for j in range(2, 8): e(f"v_mov_b32 v{REC+j}, -1")
    e("s_waitcnt lgkmcnt(0)")
    e("s_branch K2_ROUND")

gen_k1()
gen_k2()
text = HEADER + "\n".join(out) + "\n" + kd(K1, 128, 48) + kd(K2, K2_VGPR, 72)
path = sys.argv[1] if len(sys.argv) > 1 else "standalone__mpnn_edge_mlp__graph.s"
open(path, "w").write(text)
print("wrote", path, len(out), "lines; K2 LDS end", L_END)
```

```python
import sys

N = 10000
E = 320000
G = 125
CH = 2560
T = 256
OFF_SLOT = 0x280000
OFF_WF = 0x680000
OFF_W3 = 0x698000
OFF_OVC = 0x6A0000
OFF_OVF = 0x6B0000
OFF_ES = 0xC00000
OFF_ES2 = 0x1000000
WS_SIZE = 0x2000000
NLOG2E = 0xBFB8AA3B
CSC = 0x2F800000
FSC = 0xAF317218
MAGIC625 = 6871948

import os
PROF = int(os.environ.get("PROF", "0"))
OFF_DBG = 0x1800000
out = []
def stamp(i):
    if PROF:
        e(f"s_memtime s[{72+2*i}:{73+2*i}]")
        e("s_waitcnt lgkmcnt(0)")
def stamp_rt(i):
    if PROF:
        e(f"s_memrealtime s[{72+2*i}:{73+2*i}]")
        e("s_waitcnt lgkmcnt(0)")
def stamp_dump(srdw, wave, koff, nst=14):
    if PROF:
        e("s_mov_b64 exec, -1")
        e("v_mov_b32 v20, 0")
        for i in range(nst):
            e(f"v_writelane_b32 v20, s{72+2*i}, {i}")
        e(f"s_lshl_b32 s70, s2, 4")
        e(f"s_add_u32 s70, s70, s{wave}")
        e("s_lshl_b32 s70, s70, 6")
        e(f"s_add_u32 s70, s70, {OFF_DBG + koff}")
        e("v_mbcnt_lo_u32_b32 v21, -1, 0")
        e("v_mbcnt_hi_u32_b32 v21, -1, v21")
        e("v_lshlrev_b32 v21, 2, v21")
        e("s_mov_b64 exec, 0xffff")
        e(f"buffer_store_dword v20, v21, s[{srdw}:{srdw+3}], s70 offen")
def e(s=""):
    out.append("    " + s if s and not s.endswith(":") else s)
def lab(s):
    out.append(s + ":")
def vr(b, n):
    return f"v[{b}:{b+n-1}]" if n > 1 else f"v{b}"
def sr(b, n):
    return f"s[{b}:{b+n-1}]" if n > 1 else f"s{b}"
def srd(d, lo, hi, size, stride=0):
    e(f"s_mov_b32 s{d}, s{lo}")
    if stride:
        e(f"s_or_b32 s{d+1}, s{hi}, {hex(stride << 16)}")
    else:
        e(f"s_mov_b32 s{d+1}, s{hi}")
    e(f"s_mov_b32 s{d+2}, {size}")
    e(f"s_mov_b32 s{d+3}, 0x00020000")

K1 = "mpnn_prep_kernel"
K2 = "mpnn_main_kernel"
K1_LDS = 102400
K2_LDS = 162560

HEADER = f"""; Kernarg layout for this problem (72 bytes, ptrs only, base s[0:1]):
; @launch kernel={K1} grid=(253,1,1) block=(640,1,1) lds={K1_LDS}
; @launch kernel={K2} grid=(256,1,1) block=(1024,1,1) lds={K2_LDS}
.amdgcn_target "amdgcn-amd-amdhsa--gfx950"
"""

def kd(name, vgpr, sgpr):
    acc = (vgpr + 3) // 4 * 4
    return f""".section .rodata,"a"
.p2align 6
.amdhsa_kernel {name}
  .amdhsa_next_free_vgpr {vgpr}
  .amdhsa_next_free_sgpr {sgpr}
  .amdhsa_accum_offset {acc}
  .amdhsa_group_segment_fixed_size 0
  .amdhsa_kernarg_size 72
  .amdhsa_user_sgpr_count 2
  .amdhsa_user_sgpr_kernarg_segment_ptr 1
  .amdhsa_system_sgpr_workgroup_id_x 1
.end_amdhsa_kernel
"""

def begin(name):
    out.append(".text")
    out.append(f".globl {name}")
    out.append(".p2align 8")
    out.append(f".type {name},@function")
    lab(name)

def gen_k1():
    begin(K1)
    e("s_cmp_ge_u32 s2, 253")
    e("s_cbranch_scc1 K1_END")
    stamp_rt(0); stamp(1)
    e("s_load_dwordx4 s[4:7], s[0:1], 0")
    e("s_load_dwordx4 s[8:11], s[0:1], 16")
    e("s_load_dwordx4 s[12:15], s[0:1], 32")
    e("s_load_dwordx2 s[16:17], s[0:1], 64")
    e("v_and_b32 v2, 63, v0")
    e("v_lshrrev_b32 v3, 6, v0")
    e("v_lshlrev_b32 v1, 4, v0")
    e("v_readfirstlane_b32 s32, v3")
    e("s_cmp_ge_u32 s2, 125")
    e("s_cbranch_scc1 K1_GEMM")
    LE = 36864
    e("s_mul_i32 s3, s2, 10240")
    e("v_lshlrev_b32 v57, 5, v0")
    e("s_waitcnt lgkmcnt(0)")
    stamp(2)
    srd(24, 10, 11, E * 4)
    srd(28, 8, 9, E * 4)
    e("buffer_load_dwordx4 v[4:7], v1, s[24:27], s3 offen")
    e("buffer_load_dwordx4 v[8:11], v1, s[28:31], s3 offen")
    srd(44, 6, 7, E * 8)
    e("s_lshl_b32 s3, s3, 1")
    e("buffer_load_dwordx4 v[60:63], v57, s[44:47], s3 offen")
    e("buffer_load_dwordx4 v[64:67], v57, s[44:47], s3 offen offset:16")
    srd(20, 16, 17, WS_SIZE)
    for i in range(4):
        e(f"v_mov_b32 v{12+i}, -1")
    e("v_mov_b32 v16, 0")
    e("v_lshlrev_b32 v17, 2, v0")
    e("ds_write_b128 v1, v[12:15]")
    e("ds_write_b128 v1, v[12:15] offset:10240")
    e("ds_write_b128 v1, v[12:15] offset:20480")
    e("ds_write_b32 v17, v16 offset:32768")
    e("s_cmp_ge_u32 s32, 2")
    e("s_cbranch_scc1 K1_S1")
    e("ds_write_b128 v1, v[12:15] offset:30720")
    lab("K1_S1")
    e(f"s_mov_b32 s33, {MAGIC625}")
    e("v_mov_b32 v18, 1")
    e("s_waitcnt lgkmcnt(0)")
    e("s_barrier")
    stamp(3)
    e("s_waitcnt vmcnt(3)")
    stamp(4)
    for j in range(4):
        e(f"v_lshl_add_u32 v16, v{4+j}, 4, 15")
        e(f"v_mul_hi_u32_u24 v{20+j}, s33, v16")
        e(f"v_lshlrev_b32 v17, 2, v{20+j}")
        e(f"ds_add_rtn_u32 v{28+j}, v17, v18 offset:32768")
    for j in range(4):
        e(f"v_mul_u32_u24 v16, 625, v{20+j}")
        e("v_lshrrev_b32 v16, 4, v16")
        e(f"v_sub_u32 v{32+j}, v{4+j}, v16")
        e(f"v_lshlrev_b32 v{36+j}, 7, v{20+j}")
    e("s_waitcnt vmcnt(2)")
    for j in range(4):
        e(f"v_lshl_or_b32 v{32+j}, v{32+j}, 14, v{8+j}")
    e("s_waitcnt lgkmcnt(0)")
    for j in range(4):
        e(f"v_lshl_add_u32 v{36+j}, v{28+j}, 2, v{36+j}")
        e(f"v_lshlrev_b32 v{24+j}, 1, v{36+j}")
    e("v_max_u32 v16, v28, v29")
    e("v_max3_u32 v16, v16, v30, v31")
    e("v_cmp_lt_u32 vcc, 31, v16")
    e("s_cbranch_vccnz K1_SLOW")
    for j in range(4):
        e(f"ds_write_b32 v{36+j}, v{32+j}")
    e("s_waitcnt vmcnt(0)")
    for j in range(4):
        e(f"ds_write_b64 v{24+j}, v[{60+2*j}:{61+2*j}] offset:{LE}")
    lab("K1_S2")
    e("v_lshrrev_b32 v19, 3, v0")
    e("v_mul_u32_u24 v16, 16000, v19")
    e("v_and_b32 v17, 7, v0")
    e("v_lshlrev_b32 v17, 4, v17")
    e("v_add_u32 v16, v17, v16")
    e("v_lshl_add_u32 v57, v19, 8, v17")
    e(f"v_add_u32 v57, {LE}, v57")
    e("v_lshlrev_b32 v19, 2, v19")
    e("s_lshl_b32 s34, s2, 7")
    e(f"s_add_u32 s34, s34, {OFF_SLOT}")
    e("s_add_u32 s35, s34, 1280000")
    e("s_add_u32 s36, s34, 2560000")
    e("s_add_u32 s37, s34, 3840000")
    e("s_waitcnt lgkmcnt(0)")
    stamp(5)
    e("s_barrier")
    stamp(6)
    D = OFF_ES - OFF_SLOT
    for k in range(3):
        e(f"ds_read_b128 v[{40+4*k}:{43+4*k}], v1 offset:{10240*k}")
        e(f"ds_read_b128 v[{68+4*k}:{71+4*k}], v57 offset:{20480*k}")
    for k in range(3):
        e(f"ds_read_b32 v{4+k}, v19 offset:{32768 + 320*k}")
    e("v_mov_b32 v7, 0")
    e("s_cmp_ge_u32 s32, 2")
    e("s_cbranch_scc1 K1_S3")
    e("ds_read_b128 v[52:55], v1 offset:30720")
    e("ds_read_b128 v[80:83], v57 offset:61440")
    e(f"ds_read_b32 v7, v19 offset:{32768 + 960}")
    e("v_mov_b32 v17, 0")
    e("ds_read_b32 v56, v17 offset:33792")
    e(f"s_add_u32 s39, s37, {D}")
    e("s_waitcnt lgkmcnt(0)")
    e("buffer_store_dwordx4 v[52:55], v16, s[20:23], s37 offen")
    e("buffer_store_dwordx4 v[80:83], v16, s[20:23], s39 offen")
    e("s_lshl_b32 s38, s2, 2")
    e(f"s_add_u32 s38, s38, {OFF_OVC}")
    e("v_cmp_eq_u32 vcc, 0, v0")
    e("s_and_saveexec_b64 s[40:41], vcc")
    e("s_cbranch_execz K1_S4")
    e("buffer_store_dword v56, v17, s[20:23], s38 offen")
    lab("K1_S4")
    e("s_mov_b64 exec, s[40:41]")
    lab("K1_S3")
    for k in range(3):
        e(f"s_add_u32 s39, s{34+k}, {D}")
        e(f"s_waitcnt lgkmcnt({8-2*k})")
        e(f"buffer_store_dwordx4 v[{40+4*k}:{43+4*k}], v16, s[20:23], s{34+k} offen")
        e(f"s_waitcnt lgkmcnt({7-2*k})")
        e(f"buffer_store_dwordx4 v[{68+4*k}:{71+4*k}], v16, s[20:23], s39 offen")
    e("s_waitcnt lgkmcnt(0)")
    for k in range(4):
        e(f"v_cmp_lt_u32 vcc, 16, v{4+k}")
        e("s_and_saveexec_b64 s[40:41], vcc")
        e(f"s_cbranch_execz K1_E{k}")
        e(f"ds_read_b128 v[8:11], v57 offset:{20480*k + 128}")
        e(f"s_add_u32 s39, s{34+k}, {OFF_ES2 - OFF_SLOT}")
        e("s_waitcnt lgkmcnt(0)")
        e("buffer_store_dwordx4 v[8:11], v16, s[20:23], s39 offen")
        e("s_nop 1")
        lab(f"K1_E{k}")
        e("s_mov_b64 exec, s[40:41]")
    stamp(7)
    if PROF: e("s_waitcnt vmcnt(0)")
    stamp(8); stamp_rt(9)
    stamp_dump(20, 32, 0)
    e("s_endpgm")
    lab("K1_SLOW")
    e(f"s_mul_i32 s39, s2, {CH * 16}")
    e(f"s_add_u32 s39, s39, {OFF_OVF}")
    e("v_mov_b32 v17, 0")
    e("s_waitcnt vmcnt(0)")
    for j in range(4):
        e(f"v_cmp_gt_u32 vcc, 32, v{28+j}")
        e("s_and_saveexec_b64 s[40:41], vcc")
        e(f"ds_write_b32 v{36+j}, v{32+j}")
        e(f"ds_write_b64 v{24+j}, v[{60+2*j}:{61+2*j}] offset:{LE}")
        e("s_andn2_b64 exec, s[40:41], exec")
        e(f"s_cbranch_execz K1_SL{j}")
        e("ds_add_rtn_u32 v16, v17, v18 offset:33792")
        e(f"v_mov_b32 v12, v{32+j}")
        e(f"v_mov_b32 v13, v{20+j}")
        e(f"v_mov_b32 v14, v{60+2*j}")
        e(f"v_mov_b32 v15, v{61+2*j}")
        e("s_waitcnt lgkmcnt(0)")
        e("v_lshlrev_b32 v16, 4, v16")
        e("buffer_store_dwordx4 v[12:15], v16, s[20:23], s39 offen")
        e("s_nop 1")
        lab(f"K1_SL{j}")
        e("s_mov_b64 exec, s[40:41]")
    e("s_branch K1_S2")
    lab("K1_GEMM")
    e("s_sub_u32 s3, s2, 125")
    e("v_lshrrev_b32 v4, 4, v2")
    e("v_and_b32 v5, 15, v2")
    e("v_lshlrev_b32 v6, 1, v4")
    e("v_xor_b32 v6, v6, v5")
    e("v_lshlrev_b32 v6, 4, v6")
    e("v_lshl_add_u32 v6, v4, 8, v6")
    e("v_lshlrev_b32 v7, 4, v4")
    e("v_lshl_add_u32 v7, v5, 8, v7")
    e("s_waitcnt lgkmcnt(0)")
    stamp(2)
    e("s_cmp_ge_u32 s3, 126")
    e("s_cselect_b32 s24, s14, s12")
    e("s_cselect_b32 s25, s15, s13")
    e("s_mov_b32 s26, 65536")
    e("s_mov_b32 s27, 0x00020000")
    e("s_cmp_ge_u32 s3, 125")
    e("s_cselect_b32 s33, 1, 0")
    e("s_and_b32 s33, s33, s3")
    e("s_lshl_b32 s33, s33, 15")
    for k in range(4):
        if k == 3:
            e("s_cmp_ge_u32 s32, 2")
            e("s_cbranch_scc1 K1_G1")
        e(f"s_add_u32 s34, s32, {10 * k}")
        e("s_lshl_b32 s35, s34, 6")
        e("s_and_b32 s35, s35, 128")
        e(f"v_xor_b32 v{8+k}, s35, v6")
        e("s_lshl_b32 s34, s34, 10")
        e("s_mov_b32 m0, s34")
        e("s_add_u32 s34, s34, s33")
        e(f"buffer_load_dwordx4 v{8+k}, s[24:27], s34 offen lds")
    lab("K1_G1")
    srd(20, 16, 17, WS_SIZE)
    e("v_lshrrev_b32 v12, 2, v5")
    e("v_and_b32 v13, 3, v2")
    e("v_lshl_add_u32 v14, v4, 3, v12")
    e("v_lshlrev_b32 v14, 8, v14")
    e("v_lshl_add_u32 v14, v13, 3, v14")
    e("v_lshl_add_u32 v14, v12, 5, v14")
    e("v_and_b32 v15, 1, v4")
    e("v_lshl_add_u32 v14, v15, 7, v14")
    e("s_cmp_ge_u32 s3, 125")
    e("s_cbranch_scc1 K1_TR")
    srd(28, 4, 5, N * 256)
    e("s_cmp_ge_u32 s32, 5")
    e("s_cselect_b32 s36, 1, 0")
    e("s_mul_i32 s37, s36, 5")
    e("s_sub_u32 s37, s32, s37")
    e("s_mul_i32 s38, s3, 80")
    e("s_lshl_b32 s37, s37, 4")
    e("s_add_u32 s38, s38, s37")
    e("s_lshl_b32 s38, s38, 8")
    for s in range(4):
        e(f"buffer_load_dwordx4 v[{16+4*s}:{19+4*s}], v7, s[28:31], s38 offen offset:{64*s}")
    e("s_lshl_b32 s39, s36, 7")
    for ft in range(4):
        e(f"s_add_u32 s40, s39, {ft << 5}")
        e(f"v_xor_b32 v{32+ft}, s40, v14")
    stamp(3)
    e("s_waitcnt vmcnt(4)")
    stamp(4)
    e("s_barrier")
    stamp(5)
    for s in range(4):
        for ft in range(4):
            for v in range(2):
                b = 64 + (ft * 4 + s) * 4 + 2 * v
                e(f"ds_read_b64_tr_b16 v[{b}:{b+1}], v{32+ft} offset:{8192*s + 1024*v}")
    e("v_lshlrev_b32 v36, 3, v4")
    e("v_lshl_add_u32 v36, v5, 8, v36")
    e("s_add_u32 s38, s38, s39")
    e(f"s_mov_b32 s42, {hex(NLOG2E)}")
    e(f"s_mov_b32 s43, {hex(NLOG2E)}")
    e("s_waitcnt vmcnt(0)")
    for s in range(4):
        e(f"s_waitcnt lgkmcnt({min(15, 24 - 8 * s)})")
        for ft in range(4):
            b = 64 + (ft * 4 + s) * 4
            c = "0" if s == 0 else f"v[{40+4*ft}:{43+4*ft}]"
            e(f"v_mfma_f32_16x16x32_bf16 v[{40+4*ft}:{43+4*ft}], v[{b}:{b+3}], v[{16+4*s}:{19+4*s}], {c}")
    e("s_nop 7")
    stamp(6)
    for ft in range(4):
        a = 40 + 4 * ft
        e(f"v_pk_mul_f32 v[{a}:{a+1}], v[{a}:{a+1}], s[42:43]")
        e(f"v_pk_mul_f32 v[{a+2}:{a+3}], v[{a+2}:{a+3}], s[42:43]")
        e(f"v_cvt_pk_bf16_f32 v{a}, v{a}, v{a+1}")
        e(f"v_cvt_pk_bf16_f32 v{a+1}, v{a+2}, v{a+3}")
        e(f"buffer_store_dwordx2 v[{a}:{a+1}], v36, s[20:23], s38 offen offset:{32*ft}")
    stamp(7)
    if PROF: e("s_waitcnt vmcnt(0)")
    stamp(8); stamp_rt(9)
    stamp_dump(20, 32, 0)
    e("s_endpgm")
    lab("K1_TR")
    e("s_lshl_b32 s40, s32, 5")
    e("v_xor_b32 v32, s40, v14")
    e("s_waitcnt vmcnt(0)")
    e("s_barrier")
    e("s_cmp_ge_u32 s32, 8")
    e("s_cbranch_scc1 K1_W3")
    for s in range(4):
        for v in range(2):
            b = 64 + s * 4 + 2 * v
            e(f"ds_read_b64_tr_b16 v[{b}:{b+1}], v32 offset:{8192*s + 1024*v}")
    e("s_sub_u32 s38, s3, 125")
    e("s_lshl_b32 s38, s38, 15")
    e("s_lshl_b32 s39, s32, 12")
    e("s_add_u32 s38, s38, s39")
    e(f"s_add_u32 s38, s38, {OFF_WF}")
    e("v_lshlrev_b32 v36, 4, v2")
    e("s_waitcnt lgkmcnt(0)")
    for s in range(4):
        b = 64 + s * 4
        e(f"buffer_store_dwordx4 v[{b}:{b+3}], v36, s[20:23], s38 offen offset:{1024*s}")
    e("s_endpgm")
    lab("K1_W3")
    e("s_cmp_lg_u32 s32, 8")
    e("s_cbranch_scc1 K1_END")
    e("s_cmp_lg_u32 s3, 125")
    e("s_cbranch_scc1 K1_END")
    srd(28, 12, 13, 260 * 256)
    e("v_lshlrev_b32 v16, 1, v2")
    e("s_mov_b32 s38, 65536")
    for p in range(2):
        for c in range(4):
            e(f"buffer_load_ushort v{40+4*p+c}, v16, s[28:31], s38 offen offset:{256*c + 128*p}")
    e(f"s_mov_b32 s42, {hex(NLOG2E)}")
    e(f"s_mov_b32 s38, {OFF_W3}")
    e("v_lshlrev_b32 v36, 4, v2")
    e("s_waitcnt vmcnt(0)")
    for r in range(40, 48):
        e(f"v_lshlrev_b32 v{r}, 16, v{r}")
        e(f"v_mul_f32 v{r}, s42, v{r}")
    for i in range(4):
        e(f"v_cvt_pk_bf16_f32 v{48+i}, v{40+2*i}, v{41+2*i}")
    e("buffer_store_dwordx4 v[48:51], v36, s[20:23], s38 offen")
    lab("K1_END")
    e("s_endpgm")

LIST_N = 2048 + 96
QN_N = 512 + 96
L_IDX = 0
L_EL = L_IDX + LIST_N * 4
L_QN = L_EL + LIST_N * 8
L_CNT = L_QN + QN_N * 4
L_Q = L_CNT + 256
L_X = L_Q + 48 * 320
L_AGG = L_X + 48 * 256
L_STAGE = L_AGG + 40960
L_END = L_STAGE + 65536
assert L_X % 256 == 0 and L_STAGE % 256 == 0 and L_END <= K2_LDS, (L_X, L_STAGE, L_END)

vLane = 1
ZT = [2, 18]
PB = 34
QB = [50, 54]
AE = 58
ASEL = 62
OH = 70
IDX = 72
TE = [80, 84]; TD = 88; TN = 90
ACC = [92, 94]
vPT = [96, 97]
vLi, vLe, vLv, vLq, vQc, vq, vVal, vQn, vNode, vL8, vFa = 98, 99, 100, 101, 102, 103, 104, 105, 106, 107, 108
vF = 110
vG4, vR4, vE4, vL16 = 112, 113, 114, 115
vOv = 116
tA, tB, tC, tD2, tE, tF = 118, 119, 120, 121, 122, 123
T4 = 124
K2_VGPR = 128
REC = 2; RANK = 6; NODE = 10; POS = 14; EA = 18; EB = 26
W2F = 34
XF = 2

SP, SE, SW, SX, SO = 8, 12, 16, 20, 24
sWave, sN0, sNc, sStage = 32, 33, 34, 35
sMask = 36; sQi = 38; sRem = 39; sC = 40; sEx = 42; s320 = 44
sOv0 = 48; sOv1 = 50; sPhase = 52; sOvG = 53; sOvC = 54; sOvS = 55; sQt = 56; sS0 = 57; sNs = 58; sFirst = 59; sLast = 28; sEs = 29; sAny = 30
EXP = os.environ.get("EXP", "")

def pk(op, d, a, b, c=None, clamp=False):
    s = f"v_pk_{op}_f32 v[{d}:{d+1}], {a}, {b}"
    if c is not None: s += f", {c}"
    if clamp: s += " clamp"
    return s
def p2(r): return f"v[{r}:{r+1}]"

def exps(p, k):
    z = ZT[p] + 4 * k
    return [f"v_exp_f32 v{TE[k%2]+i}, v{z+i}" for i in range(4)]

def unit(p, k, slot, tail=()):
    z = ZT[p] + 4 * k
    te = TE[k % 2]
    cs = f"s[{sC}:{sC+1}]"
    nv = 'novalu' in EXP
    if not nv:
        e(pk("fma", te, p2(te), cs, cs, True))
        e(pk("fma", te + 2, p2(te + 2), cs, cs, True))
        e(pk("mul", TD, p2(te), p2(te + 2)))
        e(pk("mul", TN, p2(z), p2(te + 2)))
    for x in slot: e(x)
    if not nv:
        e(f"v_rcp_f32 v{TD}, v{TD}")
        e(f"v_rcp_f32 v{TD+1}, v{TD+1}")
        nx = exps(p, k + 1) if k < 3 else exps(1 - p, 0)
        for x in nx: e(x)
    for x in tail: e(x)
    if not nv:
        e(pk("fma", TN, p2(z + 2), p2(te), p2(TN)))
        e(pk("fma", ACC[p], p2(TN), p2(TD), p2(ACC[p])))
    site = 4 * p + k
    e(f"s_bitcmp1_b64 s[{sMask}:{sMask+1}], {k}")
    e(f"s_cbranch_scc1 K2_FL{site}")
    lab(f"K2_RT{site}")

def T_reads():
    r = []
    for p in range(2):
        r.append(f"ds_read_b64_tr_b16 v[{QB[p]+2}:{QB[p]+3}], v{vq} offset:{128*p}")
        for u in range(2):
            for v in range(2):
                b = PB + (p * 2 + u) * 4 + 2 * v
                r.append(f"ds_read_b64_tr_b16 v[{b}:{b+1}], v{vPT[p]} offset:{(2*u+v)*1024}")
    return r

def M_ops(p):
    d = vr(ZT[p], 16)
    return [f"v_mfma_f32_32x32x16_bf16 {d}, {vr(AE,4)}, {vr(QB[p],4)}, 0",
            f"v_mfma_f32_32x32x16_bf16 {d}, {vr(ASEL,4)}, {vr(PB+p*8,4)}, {d}",
            f"v_mfma_f32_32x32x16_bf16 {d}, {vr(ASEL+4,4)}, {vr(PB+p*8+4,4)}, {d}"]

def G_guard():
    return [f"s_cmp_gt_i32 s{sRem}, {100000 if 'nogather' in EXP else 0}",
            f"s_cselect_b32 s{SP+2}, {N}, 0",
            f"s_sub_u32 s{sRem}, s{sRem}, 1"]

def G_op(q):
    if 'nodma' in EXP: return ["s_nop 0"]
    return [f"s_add_u32 m0, s{sStage}, {q*1024}",
            "s_nop 0",
            f"buffer_load_dwordx4 v[{IDX+2*q}:{IDX+2*q+1}], s[{SP}:{SP+3}], 0 idxen offen lds"]

def A_reads(step):
    return [f"s_mov_b64 exec, s[{sEx}:{sEx+1}]",
            f"ds_read_b64 v[{AE}:{AE+1}], v{vLe} offset:{step*128}",
            "s_mov_b64 exec, -1",
            f"ds_read_b32 v{vVal}, v{vLv} offset:{step*64}"]

def mask_ops():
    return [f"v_ashrrev_i32 v{vVal}, 31, v{vVal}",
            f"v_bfi_b32 v{AE+2}, v{vVal}, 0, v{OH}",
            f"v_bfi_b32 v{AE+3}, v{vVal}, 0, v{OH+1}"]

def vq_op():
    return [f"v_mad_u32_u24 v{vq}, v{vQn}, s{s320}, v{vQc}"]

def idx_reads(step):
    return [f"ds_read_b32 v{IDX+2*q}, v{vLi} offset:{step*64 + 16*q}" for q in range(4)]

def qn_read(step):
    return [f"ds_read_b32 v{vQn}, v{vLq} offset:{step*16}"]

def lists_init():
    e(f"v_lshlrev_b32 v{tA}, 4, v0")
    for i in range(4): e(f"v_mov_b32 v{T4+i}, -1")
    e("v_cmp_gt_u32 vcc, 536, v0")
    e("s_and_saveexec_b64 s[46:47], vcc")
    e(f"ds_write_b128 v{tA}, v[{T4}:{T4+3}] offset:{L_IDX}")
    e("s_mov_b64 exec, s[46:47]")
    for i in range(4): e(f"v_mov_b32 v{T4+i}, 0")
    e(f"ds_write_b128 v{tA}, v[{T4}:{T4+3}] offset:{L_EL}")
    e("v_cmp_gt_u32 vcc, 216, v0")
    e("s_and_saveexec_b64 s[46:47], vcc")
    e(f"ds_write_b128 v{tA}, v[{T4}:{T4+3}] offset:{L_EL + 16384}")
    e("s_mov_b64 exec, s[46:47]")

def load_slots(tag):
    e(f"v_and_b32 v{tA}, 511, v0")
    e(f"v_lshrrev_b32 v{EB}, 2, v{tA}")
    e(f"v_lshlrev_b32 v{EB}, 7, v{EB}")
    e(f"v_and_b32 v{tB}, 3, v0")
    e(f"v_lshl_add_u32 v{tC}, v{tB}, 4, v{EB}")
    e(f"v_lshl_add_u32 v{EB}, v{tB}, 5, v{EB}")
    e("s_mul_i32 s45, s2, 16000")
    e(f"s_lshr_b32 s46, s{sWave}, 3")
    e("s_lshl_b32 s46, s46, 6")
    e("s_add_u32 s46, s45, s46")
    e(f"s_add_u32 s46, s46, {OFF_SLOT}")
    e(f"s_add_u32 s{sEs}, s45, {OFF_ES}")
    for i in range(4): e(f"v_mov_b32 v{REC+i}, -1")
    e(f"v_cmp_gt_u32 vcc, 500, v{tA}")
    e("s_mov_b64 exec, vcc")
    e(f"buffer_load_dwordx4 v[{REC}:{REC+3}], v{tC}, s[{SW}:{SW+3}], s46 offen")
    e(f"s_cmp_ge_u32 s{sWave}, 8")
    e(f"s_cbranch_scc1 K2_LS{tag}")
    e(f"buffer_load_dwordx4 v[{EA}:{EA+3}], v{EB}, s[{SW}:{SW+3}], s{sEs} offen")
    e(f"buffer_load_dwordx4 v[{EA+4}:{EA+7}], v{EB}, s[{SW}:{SW+3}], s{sEs} offen offset:16")
    lab(f"K2_LS{tag}")
    e("s_mov_b64 exec, -1")
    e(f"s_add_u32 s{sEs}, s{sEs}, {OFF_ES2 - OFF_ES}")

def load_e2(tag):
    e(f"s_cmp_lt_u32 s{sWave}, 8")
    e(f"s_cbranch_scc1 K2_E2{tag}")
    e(f"v_cmp_ne_u32 vcc, -1, v{REC}")
    e("s_nop 0")
    e("s_mov_b64 exec, vcc")
    e(f"s_cbranch_execz K2_E2X{tag}")
    e(f"buffer_load_dwordx4 v[{EA}:{EA+3}], v{EB}, s[{SW}:{SW+3}], s{sEs} offen")
    e(f"buffer_load_dwordx4 v[{EA+4}:{EA+7}], v{EB}, s[{SW}:{SW+3}], s{sEs} offen offset:16")
    lab(f"K2_E2X{tag}")
    e("s_mov_b64 exec, -1")
    lab(f"K2_E2{tag}")

def x_frag_addr(dst):
    e(f"v_lshrrev_b32 v{dst}, 2, v{vG4}")
    e(f"v_xor_b32 v{dst}, v{dst}, v{vL16}")
    e(f"v_lshlrev_b32 v{dst}, 4, v{dst}")
    e(f"v_lshl_add_u32 v{dst}, v{vL16}, 8, v{dst}")
    e(f"v_add_u32 v{dst}, {L_X}, v{dst}")
    for s in range(1, 4):
        e(f"v_xor_b32 v{dst+s}, {64*s}, v{dst}")

def gen_k2():
    begin(K2)
    e(f"s_cmp_ge_u32 s2, {T}")
    e("s_cbranch_scc1 K2_END")
    stamp_rt(0); stamp(1)
    e("s_load_dwordx4 s[60:63], s[0:1], 0")
    e("s_load_dwordx2 s[66:67], s[0:1], 48")
    e("s_load_dwordx2 s[68:69], s[0:1], 64")
    e(f"v_and_b32 v{vLane}, 63, v0")
    e(f"v_lshrrev_b32 v{tA}, 6, v0")
    e("s_mul_i32 s33, s2, 625")
    e(f"v_readfirstlane_b32 s{sWave}, v{tA}")
    e("s_add_u32 s34, s33, 625")
    e(f"s_lshr_b32 s{sN0}, s33, 4")
    e("s_lshr_b32 s34, s34, 4")
    e(f"s_sub_u32 s{sNc}, s34, s{sN0}")
    e(f"s_lshl_b32 s{sStage}, s{sWave}, 12")
    e(f"s_add_u32 s{sStage}, s{sStage}, {L_STAGE}")
    e(f"v_lshrrev_b32 v{vG4}, 4, v{vLane}")
    e(f"v_and_b32 v{vL16}, 15, v{vLane}")
    e("s_waitcnt lgkmcnt(0)")
    stamp(2)
    srd(SW, 68, 69, WS_SIZE)
    load_slots("a")
    e(f"v_lshlrev_b32 v{tC}, 4, v{vLane}")
    e(f"s_mov_b32 s45, {OFF_W3}")
    e(f"buffer_load_dwordx2 v[{QB[0]}:{QB[0]+1}], v{tC}, s[{SW}:{SW+3}], s45 offen")
    e(f"buffer_load_dwordx2 v[{QB[1]}:{QB[1]+1}], v{tC}, s[{SW}:{SW+3}], s45 offen offset:8")
    e(f"v_lshlrev_b32 v{tB}, 2, v{vLane}")
    e(f"s_mov_b32 s45, {OFF_OVC}")
    e(f"v_mov_b32 v{vOv+1}, 0")
    e(f"buffer_load_dword v{vOv}, v{tB}, s[{SW}:{SW+3}], s45 offen")
    e(f"v_cmp_gt_u32 vcc, 61, v{vLane}")
    e("s_and_saveexec_b64 s[46:47], vcc")
    e(f"buffer_load_dword v{vOv+1}, v{tB}, s[{SW}:{SW+3}], s45 offen offset:256")
    e("s_mov_b64 exec, s[46:47]")
    e(f"s_cmp_lt_u32 s{sWave}, 8")
    e("s_cbranch_scc1 K2_P1")
    srd(SX, 60, 61, N * 256)
    e(f"v_xor_b32 v{tA}, v{vG4}, v{vL16}")
    e(f"v_lshlrev_b32 v{tA}, 4, v{tA}")
    e(f"v_lshl_add_u32 v{tA}, v{vG4}, 8, v{tA}")
    e(f"s_and_b32 s45, s{sWave}, 3")
    e("s_lshl_b32 s45, s45, 6")
    e(f"v_xor_b32 v{tA}, s45, v{tA}")
    e(f"s_sub_u32 s46, s{sWave}, 8")
    e("s_lshl_b32 s46, s46, 10")
    e(f"s_add_u32 m0, s46, {L_X}")
    e(f"s_lshl_b32 s47, s{sN0}, 8")
    e("s_add_u32 s47, s47, s46")
    e(f"buffer_load_dwordx4 v{tA}, s[{SX}:{SX+3}], s47 offen lds")
    e(f"s_cmp_ge_u32 s{sWave}, 12")
    e("s_cbranch_scc1 K2_P0")
    e(f"s_add_u32 m0, s46, {L_X + 8192}")
    e("s_add_u32 s47, s47, 8192")
    e(f"buffer_load_dwordx4 v{tA}, s[{SX}:{SX+3}], s47 offen lds")
    lab("K2_P0")
    e("s_lshl_b32 s46, s46, 2")
    e(f"s_add_u32 s45, s46, {OFF_WF}")
    for s in range(4):
        e(f"buffer_load_dwordx4 v[{W2F+4*s}:{W2F+3+4*s}], v{tC}, s[{SW}:{SW+3}], s45 offen offset:{1024*s}")
    lab("K2_P1")
    srd(SP, 68, 69, N, stride=256)
    srd(SO, 66, 67, N * 256)
    lists_init()
    e(f"v_add_u32 v{tA}, {L_AGG}, v{tA}")
    e(f"ds_write_b128 v{tA}, v[{T4}:{T4+3}]")
    e(f"ds_write_b128 v{tA}, v[{T4}:{T4+3}] offset:16384")
    e(f"s_cmp_ge_u32 s{sWave}, 8")
    e("s_cbranch_scc1 K2_P2")
    e(f"ds_write_b128 v{tA}, v[{T4}:{T4+3}] offset:32768")
    lab("K2_P2")
    e(f"s_mov_b32 s{sC}, {hex(CSC)}")
    e(f"s_mov_b32 s{sC+1}, {hex(CSC)}")
    e(f"s_mov_b32 s{sEx}, 0x0f0f0f0f")
    e(f"s_mov_b32 s{sEx+1}, 0xf0f0f0f0")
    e(f"s_mov_b32 s{s320}, 320")
    e(f"s_mov_b32 s{sPhase}, 0")
    e(f"s_mov_b32 s{sFirst}, 1")
    e(f"v_lshrrev_b32 v{vR4}, 2, v{vL16}")
    e(f"v_and_b32 v{tD2}, 3, v{vLane}")
    e(f"v_lshlrev_b32 v{tA}, 2, v{vG4}")
    e(f"v_xor_b32 v{tA}, v{tA}, v{vL16}")
    e(f"v_lshlrev_b32 v{IDX+1}, 4, v{tA}")
    for q in range(1, 4): e(f"v_mov_b32 v{IDX+2*q+1}, v{IDX+1}")
    e(f"v_lshlrev_b32 v{tA}, 1, v{vG4}")
    e(f"v_lshlrev_b32 v{tB}, 2, v{vR4}")
    e(f"v_xor_b32 v{tA}, v{tA}, v{tB}")
    e(f"v_lshlrev_b32 v{tA}, 4, v{tA}")
    e(f"v_lshl_add_u32 v{tA}, v{vR4}, 8, v{tA}")
    e(f"v_lshl_add_u32 v{tA}, v{tD2}, 3, v{tA}")
    e(f"v_add_u32 v{vPT[0]}, s{sStage}, v{tA}")
    e(f"v_xor_b32 v{vPT[1]}, 128, v{vPT[0]}")
    e(f"v_lshlrev_b32 v{tA}, 5, v{vG4}")
    e(f"v_lshl_add_u32 v{tA}, v{tD2}, 3, v{tA}")
    e(f"v_add_u32 v{vQc}, {L_Q}, v{tA}")
    e(f"v_lshlrev_b32 v{vL8}, 3, v{vLane}")
    e(f"v_bfe_u32 v{tA}, v{vLane}, 3, 2")
    e(f"v_lshl_add_u32 v{vE4}, v{tA}, 2, v{tD2}")
    e(f"v_mov_b32 v{tB}, 0x3f80")
    e(f"v_and_b32 v{tC}, 1, v{vE4}")
    e(f"v_lshlrev_b32 v{tC}, 4, v{tC}")
    e(f"v_lshlrev_b32 v{tC}, v{tC}, v{tB}")
    e(f"v_lshrrev_b32 v{tE}, 1, v{vE4}")
    e(f"v_and_b32 v{tF}, 1, v{tA}")
    e(f"v_lshlrev_b32 v{tF}, 4, v{tF}")
    e(f"v_lshlrev_b32 v{tF}, v{tF}, v{tB}")
    e(f"v_lshrrev_b32 v{tA}, 1, v{tA}")
    e(f"s_not_b64 exec, s[{sEx}:{sEx+1}]")
    e(f"v_mov_b32 v{tE}, 99")
    e(f"v_mov_b32 v{tA}, 99")
    e("s_mov_b64 exec, -1")
    e(f"v_mov_b32 v{tB}, 0")
    for i in range(8):
        e(f"v_cmp_eq_u32 s[{64+2*(i%2)}:{65+2*(i%2)}], {i}, v{tE}") if False else None
    for i in range(8):
        e(f"v_cmp_eq_u32 vcc, {i}, v{tE}")
        e(f"v_mov_b32 v{AE + i%4}, 0" if i < 4 else f"v_mov_b32 v{ACC[0] + i%4}, 0")
        e("s_nop 0")
        e(f"v_cndmask_b32 v{ASEL+i}, v{tB}, v{tC}, vcc")
    for i in range(2):
        e(f"v_cmp_eq_u32 vcc, {i}, v{tA}")
        e("s_nop 1")
        e(f"v_cndmask_b32 v{OH+i}, v{tB}, v{tF}, vcc")
    e(f"v_lshlrev_b32 v{vE4}, 2, v{vE4}")
    e(f"v_lshlrev_b32 v{vR4}, 2, v{vR4}")
    e(f"v_lshlrev_b32 v{vG4}, 2, v{vG4}")
    stamp(3)
    e(f"s_cmp_lt_u32 s{sWave}, 8")
    e("s_cbranch_scc1 K2_P3")
    e("s_waitcnt vmcnt(5) lgkmcnt(0)")
    e("s_branch K2_P4")
    lab("K2_P3")
    e("s_waitcnt vmcnt(0) lgkmcnt(0)")
    lab("K2_P4")
    stamp(4)
    e(f"v_cmp_ne_u32 s[{sOv0}:{sOv0+1}], 0, v{vOv}")
    e(f"v_cmp_ne_u32 s[{sOv1}:{sOv1+1}], 0, v{vOv+1}")
    e("s_nop 0")
    e(f"s_or_b64 s[46:47], s[{sOv0}:{sOv0+1}], s[{sOv1}:{sOv1+1}]")
    e(f"s_cselect_b32 s{sLast}, 0, 1")
    load_e2("a")
    lab("K2_ROUND")
    e(f"v_cmp_ne_u32 s[{sAny}:{sAny+1}], -1, v{REC}")
    e(f"v_mov_b32 v{tA}, 1")
    e("s_barrier")
    e(f"s_cmp_eq_u64 s[{sAny}:{sAny+1}], 0")
    e("s_cbranch_scc1 K2_C1")
    for j in range(4):
        e(f"v_cmp_ne_u32 vcc, -1, v{REC+j}")
        e(f"v_bfe_u32 v{NODE+j}, v{REC+j}, 14, 6")
        e(f"v_lshlrev_b32 v{tB}, 2, v{NODE+j}")
        e("s_mov_b64 exec, vcc")
        e(f"ds_add_rtn_u32 v{RANK+j}, v{tB}, v{tA} offset:{L_CNT}")
        e("s_mov_b64 exec, -1")
    lab("K2_C1")
    e(f"v_lshlrev_b32 v{tB}, 2, v{vLane}")
    e(f"s_cmp_lt_u32 s{sWave}, 8")
    e("s_cbranch_scc1 K2_C1B")
    e("s_waitcnt vmcnt(0)")
    lab("K2_C1B")
    e("s_waitcnt lgkmcnt(0)")
    e("s_barrier")
    stamp(5)
    e(f"ds_read_b32 v{tD2}, v{tB} offset:{L_CNT}")
    e("s_waitcnt lgkmcnt(0)")
    e(f"v_add_u32 v{tD2}, 3, v{tD2}")
    e(f"v_lshrrev_b32 v{tD2}, 2, v{tD2}")
    e(f"v_mov_b32 v{tE}, v{tD2}")
    e("s_nop 1")
    for sh in (1, 2, 4, 8):
        e(f"v_add_u32_dpp v{tE}, v{tE}, v{tE} row_shr:{sh} row_mask:0xf bank_mask:0xf bound_ctrl:0")
        e("s_nop 1")
    e(f"v_add_u32_dpp v{tE}, v{tE}, v{tE} row_bcast:15 row_mask:0xa bank_mask:0xf")
    e("s_nop 1")
    e(f"v_add_u32_dpp v{tE}, v{tE}, v{tE} row_bcast:31 row_mask:0xc bank_mask:0xf")
    e("s_nop 1")
    e(f"v_readlane_b32 s{sQt}, v{tE}, 63")
    e(f"v_sub_u32 v{tE}, v{tE}, v{tD2}")
    e(f"v_lshlrev_b32 v{tE}, 2, v{tE}")
    e("s_nop 1")
    e(f"s_cmp_gt_u32 s{sQt}, 512")
    e("s_cbranch_scc1 K2_SPLIT")
    e(f"s_cmp_eq_u64 s[{sAny}:{sAny+1}], 0")
    e("s_cbranch_scc1 K2_C2")
    for j in range(4):
        e(f"v_lshlrev_b32 v{tB}, 2, v{NODE+j}")
        e(f"ds_bpermute_b32 v{POS+j}, v{tB}, v{tE}")
    for j in range(4):
        e(f"v_cmp_ne_u32 vcc, -1, v{REC+j}")
        e(f"v_and_b32 v{tA}, 0x3fff, v{REC+j}")
        e(f"v_and_b32 v{tC}, 3, v{RANK+j}")
        e(f"v_cmp_eq_u32 s[46:47], 0, v{tC}")
        e(f"s_waitcnt lgkmcnt({3 - j + 3 * j})")
        e(f"v_add_u32 v{tB}, v{POS+j}, v{RANK+j}")
        e(f"v_lshlrev_b32 v{POS+j}, 2, v{tB}")
        e(f"v_lshlrev_b32 v{tC}, 3, v{tB}")
        e("s_mov_b64 exec, vcc")
        e(f"ds_write_b32 v{POS+j}, v{tA} offset:{L_IDX}")
        e(f"ds_write_b64 v{tC}, v[{EA+2*j}:{EA+2*j+1}] offset:{L_EL}")
        e("s_and_b64 exec, vcc, s[46:47]")
        e(f"ds_write_b32 v{tB}, v{NODE+j} offset:{L_QN}")
        e("s_mov_b64 exec, -1")
    lab("K2_C2")
    e(f"s_cmp_lt_u32 s{sWave}, 8")
    e("s_cbranch_scc1 K2_NOQ")
    e(f"s_cmp_eq_u32 s{sFirst}, 0")
    e("s_cbranch_scc1 K2_NOQ")
    x_frag_addr(T4)
    XQ = [80, 84, 88]
    QA = [92, 28, 30]
    QA = [26 + 2, 104, 108]
    for s in range(4):
        for nt in range(3):
            e(f"ds_read_b128 v[{XQ[nt]}:{XQ[nt]+3}], v{T4+s} offset:{4096*nt}")
        for nt in range(3):
            e(f"s_waitcnt lgkmcnt({2-nt})")
            d = vr(QA[nt], 4)
            c = "0" if s == 0 else d
            e(f"v_mfma_f32_16x16x32_bf16 {d}, v[{W2F+4*s}:{W2F+3+4*s}], v[{XQ[nt]}:{XQ[nt]+3}], {c}")
    e(f"s_mov_b32 s46, {hex(NLOG2E)}")
    e(f"s_mov_b32 s47, {hex(NLOG2E)}")
    e(f"v_mul_u32_u24 v{tA}, 320, v{vL16}")
    e(f"v_lshl_add_u32 v{tA}, v{vG4}, 1, v{tA}")
    e(f"s_lshl_b32 s45, s{sWave}, 5")
    e(f"s_add_u32 s45, s45, {L_Q - 256}")
    e(f"v_add_u32 v{tA}, s45, v{tA}")
    e("s_nop 1")
    for nt in range(3):
        a = QA[nt]
        e(f"v_pk_mul_f32 v[{a}:{a+1}], v[{a}:{a+1}], s[46:47]")
        e(f"v_pk_mul_f32 v[{a+2}:{a+3}], v[{a+2}:{a+3}], s[46:47]")
        e(f"v_cvt_pk_bf16_f32 v{a}, v{a}, v{a+1}")
        e(f"v_cvt_pk_bf16_f32 v{a+1}, v{a+2}, v{a+3}")
        e(f"ds_write_b64 v{tA}, v[{a}:{a+1}] offset:{5120*nt}")
    e(f"v_lshlrev_b32 v{vL8}, 3, v{vLane}")
    lab("K2_NOQ")
    e(f"s_mov_b32 s{sFirst}, 0")
    e(f"s_add_u32 s45, s{sQt}, 3")
    e("s_lshr_b32 s45, s45, 2")
    e("s_lshr_b32 s46, s45, 4")
    e("s_and_b32 s45, s45, 15")
    e(f"s_mul_i32 s{sS0}, s46, s{sWave}")
    e(f"s_min_u32 s47, s45, s{sWave}")
    e(f"s_add_u32 s{sS0}, s{sS0}, s47")
    e(f"s_cmp_lt_u32 s{sWave}, s45")
    e(f"s_addc_u32 s{sNs}, s46, 0")
    e(f"s_mov_b32 s{sRem}, s{sNs}")
    e(f"s_lshl_b32 s45, s{sS0}, 6")
    e(f"v_add_u32 v{vLi}, s45, v{vG4}")
    e(f"v_add_u32 v{vLv}, s45, v{vE4}")
    e(f"v_lshlrev_b32 v{vLe}, 1, v{vLv}")
    e(f"v_add_u32 v{vLe}, {L_EL}, v{vLe}")
    e(f"s_lshl_b32 s45, s{sS0}, 4")
    e(f"s_add_u32 s45, s45, {L_QN}")
    e(f"v_add_u32 v{vLq}, s45, v{vR4}")
    e(f"v_lshl_add_u32 v{tB}, v{vLane}, 2, s45")
    e("s_waitcnt lgkmcnt(0)")
    e("s_barrier")
    stamp(6)
    for x in idx_reads(0): e(x)
    for x in qn_read(0): e(x)
    e(f"ds_read2_b32 v[{tC}:{tC+1}], v{tB} offset0:0 offset1:1")
    for x in G_guard(): e(x)
    e("s_waitcnt lgkmcnt(2)")
    for q in range(4):
        for x in G_op(q): e(x)
    e("s_waitcnt lgkmcnt(0)")
    for x in vq_op(): e(x)
    e(f"s_lshl_b32 s45, s{sNs}, 2")
    e(f"v_cmp_ne_u32 s[{sMask}:{sMask+1}], v{tC}, v{tC+1}")
    e(f"v_cmp_gt_u32 vcc, s45, v{vLane}")
    e(f"v_lshlrev_b32 v{vNode}, 10, v{tC}")
    e(f"v_add_u32 v{vNode}, {L_AGG}, v{vNode}")
    e(f"s_and_b64 s[{sMask}:{sMask+1}], s[{sMask}:{sMask+1}], vcc")
    e("s_sub_u32 s45, s45, 1")
    e(f"s_bitset1_b64 s[{sMask}:{sMask+1}], s45")
    e(f"s_mov_b32 s{sQi}, 0")
    stamp(7)
    e(f"s_cmp_eq_u32 s{sNs}, 0")
    e("s_cbranch_scc1 K2_REND")
    for x in A_reads(0): e(x)
    for x in idx_reads(1): e(x)
    for x in qn_read(1): e(x)
    e("s_waitcnt vmcnt(0)")
    stamp(8)
    for x in T_reads(): e(x)
    e("s_waitcnt lgkmcnt(10)")
    for x in mask_ops(): e(x)
    for x in G_guard(): e(x)
    e("s_waitcnt lgkmcnt(0)")
    for x in M_ops(0): e(x)
    for q in range(4):
        for x in G_op(q): e(x)
    e("s_nop 3")
    for x in exps(0, 0): e(x)
    stamp(9)
    e(".p2align 6")
    lab("K2_LOOP")
    if 'noprio' not in EXP:
        e("s_setprio 0")
        e(f"s_cmp_lt_u32 s{sNs}, 2")
        e("s_cbranch_scc1 K2_PR")
        e("s_setprio 1")
        e(f"s_cmp_lt_u32 s{sNs}, 3")
        e("s_cbranch_scc1 K2_PR")
        e("s_setprio 2")
        e(f"s_cmp_lt_u32 s{sNs}, 4")
        e("s_cbranch_scc1 K2_PR")
        e("s_setprio 3")
        lab("K2_PR")
    mh = M_ops(1); ml = M_ops(0)
    unit(0, 0, [mh[0]], ["s_waitcnt lgkmcnt(0)"] + vq_op() + A_reads(1) + idx_reads(2))
    unit(0, 1, [mh[1]], ["s_waitcnt lgkmcnt(0)"] + mask_ops())
    unit(0, 2, [mh[2]], ["s_waitcnt vmcnt(0)"] + T_reads())
    unit(0, 3, G_guard(), [f"v_add_u32 v{vLi}, 64, v{vLi}", f"v_add_u32 v{vLv}, 64, v{vLv}"])
    unit(1, 0, ["s_waitcnt lgkmcnt(0)", ml[0]], G_op(0) + G_op(1))
    unit(1, 1, [ml[1]], G_op(2) + G_op(3))
    unit(1, 2, [ml[2]], qn_read(2) + [f"v_add_u32 v{vLe}, 128, v{vLe}"])
    unit(1, 3, [f"s_sub_u32 s{sNs}, s{sNs}, 1"], [f"v_add_u32 v{vLq}, 16, v{vLq}"])
    e(f"s_lshr_b64 s[{sMask}:{sMask+1}], s[{sMask}:{sMask+1}], 4")
    e(f"s_add_u32 s{sQi}, s{sQi}, 4")
    e(f"s_cmp_lg_u32 s{sNs}, 0")
    e("s_cbranch_scc1 K2_LOOP")
    lab("K2_REND")
    stamp(10)
    e(f"s_cmp_eq_u32 s{sLast}, 0")
    e("s_cbranch_scc1 K2_MORE")
    lab("K2_FIN")
    UA = 80
    WU = 2
    XE = 34
    e(f"s_cmp_ge_u32 s{sWave}, 8")
    e("s_cbranch_scc1 K2_F1")
    e(f"v_lshlrev_b32 v{tC}, 4, v{vLane}")
    e(f"s_lshl_b32 s45, s{sWave}, 12")
    e(f"s_add_u32 s45, s45, {OFF_WF + 32768}")
    e("s_nop 7")
    for s in range(4):
        e(f"buffer_load_dwordx4 v[{WU+4*s}:{WU+3+4*s}], v{tC}, s[{SW}:{SW+3}], s45 offen offset:{1024*s}")
    e("s_add_u32 s45, s45, 32768")
    for s in range(4):
        e(f"buffer_load_dwordx4 v[{WU+16+4*s}:{WU+19+4*s}], v{tC}, s[{SW}:{SW+3}], s45 offen offset:{1024*s}")
    x_frag_addr(T4)
    XR = [34, 38, 42, 46, 50, 54, 58, 62, 66, 70, 74, 92]
    e("s_waitcnt lgkmcnt(0)")
    for s in range(4):
        for nt in range(3):
            b = XR[s * 3 + nt]
            e(f"ds_read_b128 v[{b}:{b+3}], v{T4+s} offset:{4096*nt}")
    for s in range(4):
        e(f"s_waitcnt vmcnt({7-s}) lgkmcnt({9-3*s})")
        for nt in range(3):
            b = XR[s * 3 + nt]
            d = vr(UA + 4 * nt, 4)
            c = "0" if s == 0 else d
            e(f"v_mfma_f32_16x16x32_bf16 {d}, v[{WU+4*s}:{WU+3+4*s}], v[{b}:{b+3}], {c}")
    lab("K2_F1")
    e(f"v_lshlrev_b32 v{tA}, 4, v0")
    e(f"v_add_u32 v{tA}, {L_AGG}, v{tA}")
    e(f"s_mul_i32 s45, s{sWave}, 272")
    e(f"s_add_u32 s45, s45, {L_Q}")
    e(f"v_lshl_add_u32 v{tB}, v{vLane}, 2, s45")
    e(f"s_mov_b32 s46, {hex(FSC)}")
    e(f"s_mov_b32 s47, {hex(FSC)}")
    e("s_waitcnt lgkmcnt(0)")
    e("s_barrier")
    stamp(11)
    CV = [96, 100, 104]
    e(f"ds_read_b128 v[{CV[0]}:{CV[0]+3}], v{tA}")
    e(f"ds_read_b128 v[{CV[1]}:{CV[1]+3}], v{tA} offset:16384")
    def conv(k):
        b = CV[k]
        e(f"v_cvt_f32_f64 v{b}, v[{b}:{b+1}]")
        e(f"v_cvt_f32_f64 v{b+1}, v[{b+2}:{b+3}]")
        e(f"v_pk_mul_f32 v[{b}:{b+1}], v[{b}:{b+1}], s[46:47]")
        e(f"v_cvt_pk_bf16_f32 v{b}, v{b}, v{b+1}")
        e(f"ds_write_b32 v{tB}, v{b} offset:{16*272*k}")
    e(f"s_cmp_ge_u32 s{sWave}, 8")
    e("s_cbranch_scc1 K2_F2")
    e(f"ds_read_b128 v[{CV[2]}:{CV[2]+3}], v{tA} offset:32768")
    e("s_waitcnt lgkmcnt(0)")
    conv(2)
    lab("K2_F2")
    e("s_waitcnt lgkmcnt(0)")
    conv(0); conv(1)
    e(f"v_mul_u32_u24 v{tC}, 272, v{vL16}")
    e(f"v_lshl_add_u32 v{tC}, v{vG4}, 2, v{tC}")
    e("s_waitcnt lgkmcnt(0)")
    e("s_barrier")
    e(f"s_cmp_ge_u32 s{sWave}, 8")
    e("s_cbranch_scc1 K2_XW")
    for s in range(4):
        for nt in range(3):
            b = XR[s * 3 + nt]
            e(f"ds_read_b128 v[{b}:{b+3}], v{tC} offset:{L_Q + 16*272*nt + 64*s}")
    e(f"v_lshlrev_b32 v{tA}, 8, v{vL16}")
    e(f"v_lshl_add_u32 v{tA}, v{vG4}, 1, v{tA}")
    e(f"s_lshl_b32 s45, s{sN0}, 8")
    e(f"s_lshl_b32 s46, s{sWave}, 5")
    e("s_add_u32 s45, s45, s46")
    e(f"s_mov_b32 s46, {hex(NLOG2E)}")
    e("s_waitcnt vmcnt(0)")
    for s in range(4):
        e(f"s_waitcnt lgkmcnt({9 - 3*s})")
        for nt in range(3):
            b = XR[s * 3 + nt]
            d = vr(UA + 4 * nt, 4)
            e(f"v_mfma_f32_16x16x32_bf16 {d}, v[{WU+16+4*s}:{WU+19+4*s}], v[{b}:{b+3}], {d}")
    e(f"s_sub_u32 s47, s{sNc}, 32")
    e(f"v_cmp_gt_u32 vcc, s47, v{vL16}")
    e("s_nop 6")
    O = 2
    for i in range(12): e(f"v_mul_f32 v{O+i}, s46, v{UA+i}")
    for i in range(12): e(f"v_exp_f32 v{O+i}, v{O+i}")
    for i in range(12): e(f"v_add_f32 v{O+i}, 1.0, v{O+i}")
    for i in range(12): e(f"v_rcp_f32 v{O+i}, v{O+i}")
    for i in range(12): e(f"v_mul_f32 v{O+i}, v{O+i}, v{UA+i}")
    for nt in range(3):
        a = O + 4 * nt
        e(f"v_cvt_pk_bf16_f32 v{a}, v{a}, v{a+1}")
        e(f"v_cvt_pk_bf16_f32 v{a+1}, v{a+2}, v{a+3}")
        if nt == 2:
            e("s_mov_b64 exec, vcc")
        e(f"buffer_store_dwordx2 v[{a}:{a+1}], v{tA}, s[{SO}:{SO+3}], s45 offen")
        if nt < 2:
            e("s_add_u32 s45, s45, 4096")
    lab("K2_XW")
    if PROF: e("s_waitcnt vmcnt(0)")
    stamp(12); stamp_rt(13)
    stamp_dump(SW, sWave, 0x100000)
    lab("K2_END")
    e("s_endpgm")
    for site in range(8):
        p, k = site // 4, site % 4
        lab(f"K2_FL{site}")
        e(f"s_add_u32 s45, s{sQi}, {k}")
        e(f"v_add_f32 v{vF}, v{ACC[p]}, v{ACC[p]+1}")
        e(f"v_readlane_b32 s45, v{vNode}, s45")
        e(f"v_cvt_f64_f32 v[{vF}:{vF+1}], v{vF}")
        e(f"v_mov_b32 v{ACC[p]}, 0")
        e(f"v_add_u32 v{vFa}, s45, v{vL8}")
        e(f"v_mov_b32 v{ACC[p]+1}, 0")
        e(f"ds_add_f64 v{vFa}, v[{vF}:{vF+1}] offset:{512*p}")
        e(f"s_branch K2_RT{site}")
    lab("K2_SPLIT")
    e(f"s_mov_b32 s{sLast}, 0")
    e("s_waitcnt vmcnt(0)")
    e("s_barrier")
    e("s_branch K2_PAIR")
    lab("K2_MORE")
    e("s_waitcnt vmcnt(0) lgkmcnt(0)")
    e("s_barrier")
    e(f"s_cmp_eq_u32 s{sPhase}, 0")
    e("s_cbranch_scc1 K2_OVSTART")
    e(f"s_cmp_ge_u32 s{sPhase}, 4")
    e("s_cbranch_scc1 K2_OVNEXT")
    lab("K2_PAIR")
    e(f"s_add_u32 s{sPhase}, s{sPhase}, 1")
    load_slots("b")
    lists_init()
    e("s_waitcnt vmcnt(0)")
    load_e2("b")
    e("s_waitcnt vmcnt(0)")
    for k in range(4):
        e(f"s_cmp_eq_u32 s{sPhase}, {k+1}")
        e(f"s_cbranch_scc0 K2_PK{k}")
        e(f"v_mov_b32 v{REC}, v{REC+k}")
        e(f"v_mov_b32 v{EA}, v{EA+2*k}")
        e(f"v_mov_b32 v{EA+1}, v{EA+2*k+1}")
        lab(f"K2_PK{k}")
    for j in range(1, 4): e(f"v_mov_b32 v{REC+j}, -1")
    e("s_waitcnt lgkmcnt(0)")
    e("s_branch K2_ROUND")
    lab("K2_OVSTART")
    e(f"s_mov_b32 s{sPhase}, 4")
    lab("K2_OVNEXT")
    e(f"s_cmp_eq_u32 s{sPhase}, 4")
    e("s_cbranch_scc1 K2_OVPICK")
    e(f"s_add_u32 s{sOvS}, s{sOvS}, 1024")
    e(f"s_cmp_lt_u32 s{sOvS}, s{sOvC}")
    e("s_cbranch_scc1 K2_OVLOAD")
    lab("K2_OVPICK")
    e(f"s_mov_b32 s{sPhase}, 5")
    e(f"s_mov_b32 s{sOvS}, 0")
    e(f"s_cmp_lg_u64 s[{sOv0}:{sOv0+1}], 0")
    e("s_cbranch_scc0 K2_OVP1")
    e(f"s_ff1_i32_b64 s{sOvG}, s[{sOv0}:{sOv0+1}]")
    e(f"s_bitset0_b64 s[{sOv0}:{sOv0+1}], s{sOvG}")
    e(f"v_readlane_b32 s{sOvC}, v{vOv}, s{sOvG}")
    e("s_branch K2_OVLOAD")
    lab("K2_OVP1")
    e(f"s_cmp_lg_u64 s[{sOv1}:{sOv1+1}], 0")
    e("s_cbranch_scc0 K2_FIN")
    e(f"s_ff1_i32_b64 s{sOvG}, s[{sOv1}:{sOv1+1}]")
    e(f"s_bitset0_b64 s[{sOv1}:{sOv1+1}], s{sOvG}")
    e(f"v_readlane_b32 s{sOvC}, v{vOv+1}, s{sOvG}")
    e(f"s_add_u32 s{sOvG}, s{sOvG}, 64")
    lab("K2_OVLOAD")
    e(f"s_mul_i32 s45, s{sOvG}, {CH*16}")
    e(f"s_lshl_b32 s46, s{sOvS}, 4")
    e("s_add_u32 s45, s45, s46")
    e(f"s_add_u32 s45, s45, {OFF_OVF}")
    e(f"v_lshlrev_b32 v{tB}, 4, v0")
    e(f"buffer_load_dwordx4 v[{REC}:{REC+3}], v{tB}, s[{SW}:{SW+3}], s45 offen")
    lists_init()
    e(f"v_add_u32 v{tB}, s{sOvS}, v0")
    e("s_waitcnt vmcnt(0)")
    e(f"v_cmp_gt_u32 vcc, s{sOvC}, v{tB}")
    e(f"v_cmp_eq_u32 s[46:47], s2, v{REC+1}")
    e("s_and_b64 vcc, vcc, s[46:47]")
    e(f"v_mov_b32 v{tC}, -1")
    e(f"v_cndmask_b32 v{REC}, v{tC}, v{REC}, vcc")
    e(f"v_mov_b32 v{EA}, v{REC+2}")
    e(f"v_mov_b32 v{EA+1}, v{REC+3}")
    for j in range(1, 4): e(f"v_mov_b32 v{REC+j}, -1")
    e("s_waitcnt lgkmcnt(0)")
    e("s_branch K2_ROUND")

gen_k1()
gen_k2()
text = HEADER + "\n".join(out) + "\n" + kd(K1, 128, 100 if PROF else 48) + kd(K2, K2_VGPR, 100 if PROF else 72)
path = sys.argv[1] if len(sys.argv) > 1 else "standalone__mpnn_edge_mlp__graph.s"
open(path, "w").write(text)
print("wrote", path, len(out), "lines; K2 LDS end", L_END)
```

```python
import sys

N = 10000
E = 320000
G = 125
CH = 2560
T = 256
OFF_SLOT = 0x280000
OFF_WF = 0x680000
OFF_W3 = 0x698000
OFF_OVC = 0x6A0000
OFF_OVF = 0x6B0000
OFF_ES = 0xC00000
OFF_ES2 = 0x1000000
WS_SIZE = 0x2000000
NLOG2E = 0xBFB8AA3B
CSC = 0x2F800000
FSC = 0xAF317218
MAGIC625 = 6871948

import os
PROF = int(os.environ.get("PROF", "0"))
OFF_DBG = 0x1800000
out = []
def stamp(i):
    if PROF:
        e(f"s_memtime s[{72+2*i}:{73+2*i}]")
        e("s_waitcnt lgkmcnt(0)")
def stamp_rt(i):
    if PROF:
        e(f"s_memrealtime s[{72+2*i}:{73+2*i}]")
        e("s_waitcnt lgkmcnt(0)")
def stamp_dump(srdw, wave, koff, nst=14):
    if PROF:
        e("s_mov_b64 exec, -1")
        e("v_mov_b32 v20, 0")
        for i in range(nst):
            e(f"v_writelane_b32 v20, s{72+2*i}, {i}")
        e(f"s_lshl_b32 s70, s2, 4")
        e(f"s_add_u32 s70, s70, s{wave}")
        e("s_lshl_b32 s70, s70, 6")
        e(f"s_add_u32 s70, s70, {OFF_DBG + koff}")
        e("v_mbcnt_lo_u32_b32 v21, -1, 0")
        e("v_mbcnt_hi_u32_b32 v21, -1, v21")
        e("v_lshlrev_b32 v21, 2, v21")
        e("s_mov_b64 exec, 0xffff")
        e(f"buffer_store_dword v20, v21, s[{srdw}:{srdw+3}], s70 offen")
def e(s=""):
    out.append("    " + s if s and not s.endswith(":") else s)
def lab(s):
    out.append(s + ":")
def vr(b, n):
    return f"v[{b}:{b+n-1}]" if n > 1 else f"v{b}"
def sr(b, n):
    return f"s[{b}:{b+n-1}]" if n > 1 else f"s{b}"
def srd(d, lo, hi, size, stride=0):
    e(f"s_mov_b32 s{d}, s{lo}")
    if stride:
        e(f"s_or_b32 s{d+1}, s{hi}, {hex(stride << 16)}")
    else:
        e(f"s_mov_b32 s{d+1}, s{hi}")
    e(f"s_mov_b32 s{d+2}, {size}")
    e(f"s_mov_b32 s{d+3}, 0x00020000")

K1 = "mpnn_prep_kernel"
K2 = "mpnn_main_kernel"
K1_LDS = 102400
K2_LDS = 162560

HEADER = f"""; Kernarg layout for this problem (72 bytes, ptrs only, base s[0:1]):
; @launch kernel={K1} grid=(253,1,1) block=(640,1,1) lds={K1_LDS}
; @launch kernel={K2} grid=(256,1,1) block=(1024,1,1) lds={K2_LDS}
.amdgcn_target "amdgcn-amd-amdhsa--gfx950"
"""

def kd(name, vgpr, sgpr):
    acc = (vgpr + 3) // 4 * 4
    return f""".section .rodata,"a"
.p2align 6
.amdhsa_kernel {name}
  .amdhsa_next_free_vgpr {vgpr}
  .amdhsa_next_free_sgpr {sgpr}
  .amdhsa_accum_offset {acc}
  .amdhsa_group_segment_fixed_size 0
  .amdhsa_kernarg_size 72
  .amdhsa_user_sgpr_count 2
  .amdhsa_user_sgpr_kernarg_segment_ptr 1
  .amdhsa_system_sgpr_workgroup_id_x 1
.end_amdhsa_kernel
"""

def begin(name):
    out.append(".text")
    out.append(f".globl {name}")
    out.append(".p2align 8")
    out.append(f".type {name},@function")
    lab(name)

def gen_k1():
    begin(K1)
    e("s_cmp_ge_u32 s2, 253")
    e("s_cbranch_scc1 K1_END")
    stamp_rt(0); stamp(1)
    e("s_load_dwordx4 s[4:7], s[0:1], 0")
    e("s_load_dwordx4 s[8:11], s[0:1], 16")
    e("s_load_dwordx4 s[12:15], s[0:1], 32")
    e("s_load_dwordx2 s[16:17], s[0:1], 64")
    e("v_and_b32 v2, 63, v0")
    e("v_lshrrev_b32 v3, 6, v0")
    e("v_lshlrev_b32 v1, 4, v0")
    e("v_readfirstlane_b32 s32, v3")
    e("s_cmp_ge_u32 s2, 125")
    e("s_cbranch_scc1 K1_GEMM")
    LE = 36864
    e("s_mul_i32 s3, s2, 10240")
    e("v_lshlrev_b32 v57, 5, v0")
    e("s_waitcnt lgkmcnt(0)")
    stamp(2)
    srd(24, 10, 11, E * 4)
    srd(28, 8, 9, E * 4)
    e("buffer_load_dwordx4 v[4:7], v1, s[24:27], s3 offen")
    e("buffer_load_dwordx4 v[8:11], v1, s[28:31], s3 offen")
    srd(44, 6, 7, E * 8)
    e("s_lshl_b32 s3, s3, 1")
    srd(20, 16, 17, WS_SIZE)
    for i in range(4):
        e(f"v_mov_b32 v{12+i}, -1")
    e("v_mov_b32 v16, 0")
    e("v_lshlrev_b32 v17, 2, v0")
    e("ds_write_b128 v1, v[12:15]")
    e("ds_write_b128 v1, v[12:15] offset:10240")
    e("ds_write_b128 v1, v[12:15] offset:20480")
    e("ds_write_b32 v17, v16 offset:32768")
    e("s_cmp_ge_u32 s32, 2")
    e("s_cbranch_scc1 K1_S1")
    e("ds_write_b128 v1, v[12:15] offset:30720")
    lab("K1_S1")
    e(f"s_mov_b32 s33, {MAGIC625}")
    e("v_mov_b32 v18, 1")
    e("s_waitcnt lgkmcnt(0)")
    e("s_barrier")
    e("buffer_load_dwordx4 v[60:63], v57, s[44:47], s3 offen")
    e("buffer_load_dwordx4 v[64:67], v57, s[44:47], s3 offen offset:16")
    stamp(3)
    e("s_waitcnt vmcnt(3)")
    stamp(4)
    for j in range(4):
        e(f"v_lshl_add_u32 v16, v{4+j}, 4, 15")
        e(f"v_mul_hi_u32_u24 v{20+j}, s33, v16")
        e(f"v_lshlrev_b32 v17, 2, v{20+j}")
        e(f"ds_add_rtn_u32 v{28+j}, v17, v18 offset:32768")
    for j in range(4):
        e(f"v_mul_u32_u24 v16, 625, v{20+j}")
        e("v_lshrrev_b32 v16, 4, v16")
        e(f"v_sub_u32 v{32+j}, v{4+j}, v16")
        e(f"v_lshlrev_b32 v{36+j}, 7, v{20+j}")
    e("s_waitcnt vmcnt(2)")
    for j in range(4):
        e(f"v_lshl_or_b32 v{32+j}, v{32+j}, 14, v{8+j}")
    e("s_waitcnt lgkmcnt(0)")
    for j in range(4):
        e(f"v_lshl_add_u32 v{36+j}, v{28+j}, 2, v{36+j}")
        e(f"v_lshlrev_b32 v{24+j}, 1, v{36+j}")
    e("v_max_u32 v16, v28, v29")
    e("v_max3_u32 v16, v16, v30, v31")
    e("v_cmp_lt_u32 vcc, 31, v16")
    e("s_cbranch_vccnz K1_SLOW")
    for j in range(4):
        e(f"ds_write_b32 v{36+j}, v{32+j}")
    e("s_waitcnt vmcnt(0)")
    for j in range(4):
        e(f"ds_write_b64 v{24+j}, v[{60+2*j}:{61+2*j}] offset:{LE}")
    lab("K1_S2")
    e("v_lshrrev_b32 v19, 3, v0")
    e("v_mul_u32_u24 v16, 16000, v19")
    e("v_and_b32 v17, 7, v0")
    e("v_lshlrev_b32 v17, 4, v17")
    e("v_add_u32 v16, v17, v16")
    e("v_lshl_add_u32 v57, v19, 8, v17")
    e(f"v_add_u32 v57, {LE}, v57")
    e("v_lshlrev_b32 v19, 2, v19")
    e("s_lshl_b32 s34, s2, 7")
    e(f"s_add_u32 s34, s34, {OFF_SLOT}")
    e("s_add_u32 s35, s34, 1280000")
    e("s_add_u32 s36, s34, 2560000")
    e("s_add_u32 s37, s34, 3840000")
    e("s_waitcnt lgkmcnt(0)")
    stamp(5)
    e("s_barrier")
    stamp(6)
    D = OFF_ES - OFF_SLOT
    for k in range(3):
        e(f"ds_read_b128 v[{40+4*k}:{43+4*k}], v1 offset:{10240*k}")
        e(f"ds_read_b128 v[{68+4*k}:{71+4*k}], v57 offset:{20480*k}")
    for k in range(3):
        e(f"ds_read_b32 v{4+k}, v19 offset:{32768 + 320*k}")
    e("v_mov_b32 v7, 0")
    e("s_cmp_ge_u32 s32, 2")
    e("s_cbranch_scc1 K1_S3")
    e("ds_read_b128 v[52:55], v1 offset:30720")
    e("ds_read_b128 v[80:83], v57 offset:61440")
    e(f"ds_read_b32 v7, v19 offset:{32768 + 960}")
    e("v_mov_b32 v17, 0")
    e("ds_read_b32 v56, v17 offset:33792")
    e(f"s_add_u32 s39, s37, {D}")
    e("s_waitcnt lgkmcnt(0)")
    e("buffer_store_dwordx4 v[52:55], v16, s[20:23], s37 offen")
    e("buffer_store_dwordx4 v[80:83], v16, s[20:23], s39 offen")
    e("s_lshl_b32 s38, s2, 2")
    e(f"s_add_u32 s38, s38, {OFF_OVC}")
    e("v_cmp_eq_u32 vcc, 0, v0")
    e("s_and_saveexec_b64 s[40:41], vcc")
    e("s_cbranch_execz K1_S4")
    e("buffer_store_dword v56, v17, s[20:23], s38 offen")
    lab("K1_S4")
    e("s_mov_b64 exec, s[40:41]")
    lab("K1_S3")
    for k in range(3):
        e(f"s_add_u32 s39, s{34+k}, {D}")
        e(f"s_waitcnt lgkmcnt({8-2*k})")
        e(f"buffer_store_dwordx4 v[{40+4*k}:{43+4*k}], v16, s[20:23], s{34+k} offen")
        e(f"s_waitcnt lgkmcnt({7-2*k})")
        e(f"buffer_store_dwordx4 v[{68+4*k}:{71+4*k}], v16, s[20:23], s39 offen")
    e("s_waitcnt lgkmcnt(0)")
    for k in range(4):
        e(f"v_cmp_lt_u32 vcc, 16, v{4+k}")
        e("s_and_saveexec_b64 s[40:41], vcc")
        e(f"s_cbranch_execz K1_E{k}")
        e(f"ds_read_b128 v[8:11], v57 offset:{20480*k + 128}")
        e(f"s_add_u32 s39, s{34+k}, {OFF_ES2 - OFF_SLOT}")
        e("s_waitcnt lgkmcnt(0)")
        e("buffer_store_dwordx4 v[8:11], v16, s[20:23], s39 offen")
        e("s_nop 1")
        lab(f"K1_E{k}")
        e("s_mov_b64 exec, s[40:41]")
    stamp(7)
    if PROF: e("s_waitcnt vmcnt(0)")
    stamp(8); stamp_rt(9)
    stamp_dump(20, 32, 0)
    e("s_endpgm")
    lab("K1_SLOW")
    e(f"s_mul_i32 s39, s2, {CH * 16}")
    e(f"s_add_u32 s39, s39, {OFF_OVF}")
    e("v_mov_b32 v17, 0")
    e("s_waitcnt vmcnt(0)")
    for j in range(4):
        e(f"v_cmp_gt_u32 vcc, 32, v{28+j}")
        e("s_and_saveexec_b64 s[40:41], vcc")
        e(f"ds_write_b32 v{36+j}, v{32+j}")
        e(f"ds_write_b64 v{24+j}, v[{60+2*j}:{61+2*j}] offset:{LE}")
        e("s_andn2_b64 exec, s[40:41], exec")
        e(f"s_cbranch_execz K1_SL{j}")
        e("ds_add_rtn_u32 v16, v17, v18 offset:33792")
        e(f"v_mov_b32 v12, v{32+j}")
        e(f"v_mov_b32 v13, v{20+j}")
        e(f"v_mov_b32 v14, v{60+2*j}")
        e(f"v_mov_b32 v15, v{61+2*j}")
        e("s_waitcnt lgkmcnt(0)")
        e("v_lshlrev_b32 v16, 4, v16")
        e("buffer_store_dwordx4 v[12:15], v16, s[20:23], s39 offen")
        e("s_nop 1")
        lab(f"K1_SL{j}")
        e("s_mov_b64 exec, s[40:41]")
    e("s_branch K1_S2")
    lab("K1_GEMM")
    e("s_sub_u32 s3, s2, 125")
    e("v_lshrrev_b32 v4, 4, v2")
    e("v_and_b32 v5, 15, v2")
    e("v_lshlrev_b32 v6, 1, v4")
    e("v_xor_b32 v6, v6, v5")
    e("v_lshlrev_b32 v6, 4, v6")
    e("v_lshl_add_u32 v6, v4, 8, v6")
    e("v_lshlrev_b32 v7, 4, v4")
    e("v_lshl_add_u32 v7, v5, 8, v7")
    e("s_waitcnt lgkmcnt(0)")
    stamp(2)
    e("s_cmp_ge_u32 s3, 126")
    e("s_cselect_b32 s24, s14, s12")
    e("s_cselect_b32 s25, s15, s13")
    e("s_mov_b32 s26, 65536")
    e("s_mov_b32 s27, 0x00020000")
    e("s_cmp_ge_u32 s3, 125")
    e("s_cselect_b32 s33, 1, 0")
    e("s_and_b32 s33, s33, s3")
    e("s_lshl_b32 s33, s33, 15")
    for k in range(4):
        if k == 3:
            e("s_cmp_ge_u32 s32, 2")
            e("s_cbranch_scc1 K1_G1")
        e(f"s_add_u32 s34, s32, {10 * k}")
        e("s_lshl_b32 s35, s34, 6")
        e("s_and_b32 s35, s35, 128")
        e(f"v_xor_b32 v{8+k}, s35, v6")
        e("s_lshl_b32 s34, s34, 10")
        e("s_mov_b32 m0, s34")
        e("s_add_u32 s34, s34, s33")
        e(f"buffer_load_dwordx4 v{8+k}, s[24:27], s34 offen lds")
    lab("K1_G1")
    srd(20, 16, 17, WS_SIZE)
    e("v_lshrrev_b32 v12, 2, v5")
    e("v_and_b32 v13, 3, v2")
    e("v_lshl_add_u32 v14, v4, 3, v12")
    e("v_lshlrev_b32 v14, 8, v14")
    e("v_lshl_add_u32 v14, v13, 3, v14")
    e("v_lshl_add_u32 v14, v12, 5, v14")
    e("v_and_b32 v15, 1, v4")
    e("v_lshl_add_u32 v14, v15, 7, v14")
    e("s_cmp_ge_u32 s3, 125")
    e("s_cbranch_scc1 K1_TR")
    srd(28, 4, 5, N * 256)
    e("s_cmp_ge_u32 s32, 5")
    e("s_cselect_b32 s36, 1, 0")
    e("s_mul_i32 s37, s36, 5")
    e("s_sub_u32 s37, s32, s37")
    e("s_mul_i32 s38, s3, 80")
    e("s_lshl_b32 s37, s37, 4")
    e("s_add_u32 s38, s38, s37")
    e("s_lshl_b32 s38, s38, 8")
    e("s_barrier")
    for s in range(4):
        e(f"buffer_load_dwordx4 v[{16+4*s}:{19+4*s}], v7, s[28:31], s38 offen offset:{64*s}")
    e("s_lshl_b32 s39, s36, 7")
    for ft in range(4):
        e(f"s_add_u32 s40, s39, {ft << 5}")
        e(f"v_xor_b32 v{32+ft}, s40, v14")
    stamp(3)
    e("s_waitcnt vmcnt(4)")
    stamp(4)
    e("s_barrier")
    stamp(5)
    for s in range(4):
        for ft in range(4):
            for v in range(2):
                b = 64 + (ft * 4 + s) * 4 + 2 * v
                e(f"ds_read_b64_tr_b16 v[{b}:{b+1}], v{32+ft} offset:{8192*s + 1024*v}")
    e("v_and_b32 v36, 7, v5")
    e("v_lshlrev_b32 v36, 8, v36")
    e("v_lshrrev_b32 v37, 3, v5")
    e("v_lshl_add_u32 v36, v37, 6, v36")
    e("v_and_b32 v37, 1, v4")
    e("v_lshl_add_u32 v36, v37, 5, v36")
    e("v_lshrrev_b32 v37, 1, v4")
    e("v_lshl_add_u32 v36, v37, 4, v36")
    e("s_add_u32 s38, s38, s39")
    e(f"s_mov_b32 s42, {hex(NLOG2E)}")
    e(f"s_mov_b32 s43, {hex(NLOG2E)}")
    e("s_waitcnt vmcnt(0)")
    for s in range(4):
        e(f"s_waitcnt lgkmcnt({min(15, 24 - 8 * s)})")
        for ft in range(4):
            b = 64 + (ft * 4 + s) * 4
            c = "0" if s == 0 else f"v[{40+4*ft}:{43+4*ft}]"
            e(f"v_mfma_f32_16x16x32_bf16 v[{40+4*ft}:{43+4*ft}], v[{b}:{b+3}], v[{16+4*s}:{19+4*s}], {c}")
    e("s_nop 7")
    stamp(6)
    for ft in range(4):
        a = 40 + 4 * ft
        e(f"v_pk_mul_f32 v[{a}:{a+1}], v[{a}:{a+1}], s[42:43]")
        e(f"v_pk_mul_f32 v[{a+2}:{a+3}], v[{a+2}:{a+3}], s[42:43]")
        e(f"v_cvt_pk_bf16_f32 v{56+2*ft}, v{a}, v{a+1}")
        e(f"v_cvt_pk_bf16_f32 v{57+2*ft}, v{a+2}, v{a+3}")
    e("s_nop 1")
    for b in (56, 57, 60, 61):
        e(f"v_permlane16_swap_b32 v{b}, v{b+2}")
    e("s_nop 1")
    for i in range(4): e(f"v_mov_b32 v{16+i}, v{60+i}")
    for i in range(4): e(f"v_mov_b32_dpp v{60+i}, v{56+i} row_ror:8 row_mask:0xf bank_mask:0x3")
    for i in range(4): e(f"v_mov_b32_dpp v{56+i}, v{16+i} row_ror:8 row_mask:0xf bank_mask:0xc")
    e("buffer_store_dwordx4 v[60:63], v36, s[20:23], s38 offen offset:2048")
    e("buffer_store_dwordx4 v[56:59], v36, s[20:23], s38 offen")
    stamp(7)
    if PROF: e("s_waitcnt vmcnt(0)")
    stamp(8); stamp_rt(9)
    stamp_dump(20, 32, 0)
    e("s_endpgm")
    lab("K1_TR")
    e("s_lshl_b32 s40, s32, 5")
    e("v_xor_b32 v32, s40, v14")
    e("s_waitcnt vmcnt(0)")
    e("s_barrier")
    e("s_cmp_ge_u32 s32, 8")
    e("s_cbranch_scc1 K1_W3")
    for s in range(4):
        for v in range(2):
            b = 64 + s * 4 + 2 * v
            e(f"ds_read_b64_tr_b16 v[{b}:{b+1}], v32 offset:{8192*s + 1024*v}")
    e("s_sub_u32 s38, s3, 125")
    e("s_lshl_b32 s38, s38, 15")
    e("s_lshl_b32 s39, s32, 12")
    e("s_add_u32 s38, s38, s39")
    e(f"s_add_u32 s38, s38, {OFF_WF}")
    e("v_lshlrev_b32 v36, 4, v2")
    e("s_waitcnt lgkmcnt(0)")
    for s in range(4):
        b = 64 + s * 4
        e(f"buffer_store_dwordx4 v[{b}:{b+3}], v36, s[20:23], s38 offen offset:{1024*s}")
    if PROF: e("s_waitcnt vmcnt(0)")
    stamp(8); stamp_rt(9)
    stamp_dump(20, 32, 0)
    e("s_endpgm")
    lab("K1_W3")
    e("s_cmp_lg_u32 s32, 8")
    e("s_cbranch_scc1 K1_END")
    e("s_cmp_lg_u32 s3, 125")
    e("s_cbranch_scc1 K1_END")
    srd(28, 12, 13, 260 * 256)
    e("v_lshlrev_b32 v16, 1, v2")
    e("s_mov_b32 s38, 65536")
    for p in range(2):
        for c in range(4):
            e(f"buffer_load_ushort v{40+4*p+c}, v16, s[28:31], s38 offen offset:{256*c + 128*p}")
    e(f"s_mov_b32 s42, {hex(NLOG2E)}")
    e(f"s_mov_b32 s38, {OFF_W3}")
    e("v_lshlrev_b32 v36, 4, v2")
    e("s_waitcnt vmcnt(0)")
    for r in range(40, 48):
        e(f"v_lshlrev_b32 v{r}, 16, v{r}")
        e(f"v_mul_f32 v{r}, s42, v{r}")
    for i in range(4):
        e(f"v_cvt_pk_bf16_f32 v{48+i}, v{40+2*i}, v{41+2*i}")
    e("buffer_store_dwordx4 v[48:51], v36, s[20:23], s38 offen")
    if PROF: e("s_waitcnt vmcnt(0)")
    stamp(8); stamp_rt(9)
    stamp_dump(20, 32, 0)
    lab("K1_END")
    e("s_endpgm")

LIST_N = 2048 + 96
QN_N = 512 + 96
L_IDX = 0
L_EL = L_IDX + LIST_N * 4
L_QN = L_EL + LIST_N * 8
L_CNT = L_QN + QN_N * 4
L_Q = L_CNT + 256
L_X = L_Q + 48 * 320
L_AGG = L_X + 48 * 256
L_STAGE = L_AGG + 40960
L_END = L_STAGE + 65536
assert L_X % 256 == 0 and L_STAGE % 256 == 0 and L_END <= K2_LDS, (L_X, L_STAGE, L_END)

vLane = 1
ZT = [2, 18]
PB = 34
QB = [50, 54]
AE = 58
ASEL = 62
OH = 70
IDX = 72
TE = [80, 84]; TD = 88; TN = 90
ACC = [92, 94]
vPT = [96, 97]
vLi, vLe, vLv, vLq, vQc, vq, vVal, vQn, vNode, vL8, vFa = 98, 99, 100, 101, 102, 103, 104, 105, 106, 107, 108
vF = 110
vG4, vR4, vE4, vL16 = 112, 113, 114, 115
vOv = 116
tA, tB, tC, tD2, tE, tF = 118, 119, 120, 121, 122, 123
T4 = 124
K2_VGPR = 128
REC = 2; RANK = 6; NODE = 10; POS = 14; EA = 18; EB = 26
W2F = 34
XF = 2

SP, SE, SW, SX, SO = 8, 12, 16, 20, 24
sWave, sN0, sNc, sStage = 32, 33, 34, 35
sMask = 36; sQi = 38; sRem = 39; sC = 40; sEx = 42; s320 = 44
sOv0 = 48; sOv1 = 50; sPhase = 52; sOvG = 53; sOvC = 54; sOvS = 55; sQt = 56; sS0 = 57; sNs = 58; sFirst = 59; sLast = 28; sEs = 29; sAny = 30
EXP = os.environ.get("EXP", "")

def pk(op, d, a, b, c=None, clamp=False):
    s = f"v_pk_{op}_f32 v[{d}:{d+1}], {a}, {b}"
    if c is not None: s += f", {c}"
    if clamp: s += " clamp"
    return s
def p2(r): return f"v[{r}:{r+1}]"

def exps(p, k):
    z = ZT[p] + 4 * k
    return [f"v_exp_f32 v{TE[k%2]+i}, v{z+i}" for i in range(4)]

def unit(p, k, slot, tail=()):
    z = ZT[p] + 4 * k
    te = TE[k % 2]
    cs = f"s[{sC}:{sC+1}]"
    nv = 'novalu' in EXP
    if not nv:
        e(pk("fma", te, p2(te), cs, cs, True))
        e(pk("fma", te + 2, p2(te + 2), cs, cs, True))
        e(pk("mul", TD, p2(te), p2(te + 2)))
        e(pk("mul", TN, p2(z), p2(te + 2)))
    for x in slot: e(x)
    if not nv:
        e(f"v_rcp_f32 v{TD}, v{TD}")
        e(f"v_rcp_f32 v{TD+1}, v{TD+1}")
        nx = exps(p, k + 1) if k < 3 else exps(1 - p, 0)
        for x in nx: e(x)
    for x in tail: e(x)
    if not nv:
        e(pk("fma", TN, p2(z + 2), p2(te), p2(TN)))
        e(pk("fma", ACC[p], p2(TN), p2(TD), p2(ACC[p])))
    site = 4 * p + k
    e(f"s_bitcmp1_b64 s[{sMask}:{sMask+1}], {k}")
    e(f"s_cbranch_scc1 K2_FL{site}")
    lab(f"K2_RT{site}")

def T_reads():
    r = []
    for p in range(2):
        r.append(f"ds_read_b64_tr_b16 v[{QB[p]+2}:{QB[p]+3}], v{vq} offset:{128*p}")
        for u in range(2):
            for v in range(2):
                b = PB + (p * 2 + u) * 4 + 2 * v
                r.append(f"ds_read_b64_tr_b16 v[{b}:{b+1}], v{vPT[p]} offset:{(2*u+v)*1024}")
    return r

def M_ops(p):
    d = vr(ZT[p], 16)
    return [f"v_mfma_f32_32x32x16_bf16 {d}, {vr(AE,4)}, {vr(QB[p],4)}, 0",
            f"v_mfma_f32_32x32x16_bf16 {d}, {vr(ASEL,4)}, {vr(PB+p*8,4)}, {d}",
            f"v_mfma_f32_32x32x16_bf16 {d}, {vr(ASEL+4,4)}, {vr(PB+p*8+4,4)}, {d}"]

def G_guard():
    return [f"s_cmp_gt_i32 s{sRem}, {100000 if 'nogather' in EXP else 0}",
            f"s_cselect_b32 s{SP+2}, {N}, 0",
            f"s_sub_u32 s{sRem}, s{sRem}, 1"]

def G_op(q):
    if 'nodma' in EXP: return ["s_nop 0"]
    return [f"s_add_u32 m0, s{sStage}, {q*1024}",
            "s_nop 0",
            f"buffer_load_dwordx4 v[{IDX+2*q}:{IDX+2*q+1}], s[{SP}:{SP+3}], 0 idxen offen lds"]

def A_reads(step):
    return [f"s_mov_b64 exec, s[{sEx}:{sEx+1}]",
            f"ds_read_b64 v[{AE}:{AE+1}], v{vLe} offset:{step*128}",
            "s_mov_b64 exec, -1",
            f"ds_read_b32 v{vVal}, v{vLv} offset:{step*64}"]

def mask_ops():
    return [f"v_ashrrev_i32 v{vVal}, 31, v{vVal}",
            f"v_bfi_b32 v{AE+2}, v{vVal}, 0, v{OH}",
            f"v_bfi_b32 v{AE+3}, v{vVal}, 0, v{OH+1}"]

def vq_op():
    return [f"v_mad_u32_u24 v{vq}, v{vQn}, s{s320}, v{vQc}"]

def idx_reads(step):
    return [f"ds_read_b32 v{IDX+2*q}, v{vLi} offset:{step*64 + 16*q}" for q in range(4)]

def qn_read(step):
    return [f"ds_read_b32 v{vQn}, v{vLq} offset:{step*16}"]

def lists_init():
    e(f"v_lshlrev_b32 v{tA}, 4, v0")
    for i in range(4): e(f"v_mov_b32 v{T4+i}, -1")
    e("v_cmp_gt_u32 vcc, 536, v0")
    e("s_and_saveexec_b64 s[46:47], vcc")
    e(f"ds_write_b128 v{tA}, v[{T4}:{T4+3}] offset:{L_IDX}")
    e("s_mov_b64 exec, s[46:47]")
    for i in range(4): e(f"v_mov_b32 v{T4+i}, 0")
    e(f"ds_write_b128 v{tA}, v[{T4}:{T4+3}] offset:{L_EL}")
    e("v_cmp_gt_u32 vcc, 216, v0")
    e("s_and_saveexec_b64 s[46:47], vcc")
    e(f"ds_write_b128 v{tA}, v[{T4}:{T4+3}] offset:{L_EL + 16384}")
    e("s_mov_b64 exec, s[46:47]")

def load_slots(tag):
    e(f"v_and_b32 v{tA}, 511, v0")
    e(f"v_lshrrev_b32 v{EB}, 2, v{tA}")
    e(f"v_lshlrev_b32 v{EB}, 7, v{EB}")
    e(f"v_and_b32 v{tB}, 3, v0")
    e(f"v_lshl_add_u32 v{tC}, v{tB}, 4, v{EB}")
    e(f"v_lshl_add_u32 v{EB}, v{tB}, 5, v{EB}")
    e("s_mul_i32 s45, s2, 16000")
    e(f"s_lshr_b32 s46, s{sWave}, 3")
    e("s_lshl_b32 s46, s46, 6")
    e("s_add_u32 s46, s45, s46")
    e(f"s_add_u32 s46, s46, {OFF_SLOT}")
    e(f"s_add_u32 s{sEs}, s45, {OFF_ES}")
    for i in range(4): e(f"v_mov_b32 v{REC+i}, -1")
    e(f"v_cmp_gt_u32 vcc, 500, v{tA}")
    e("s_mov_b64 exec, vcc")
    e(f"buffer_load_dwordx4 v[{REC}:{REC+3}], v{tC}, s[{SW}:{SW+3}], s46 offen")
    e(f"s_cmp_ge_u32 s{sWave}, 8")
    e(f"s_cbranch_scc1 K2_LS{tag}")
    e(f"buffer_load_dwordx4 v[{EA}:{EA+3}], v{EB}, s[{SW}:{SW+3}], s{sEs} offen")
    e(f"buffer_load_dwordx4 v[{EA+4}:{EA+7}], v{EB}, s[{SW}:{SW+3}], s{sEs} offen offset:16")
    lab(f"K2_LS{tag}")
    e("s_mov_b64 exec, -1")
    e(f"s_add_u32 s{sEs}, s{sEs}, {OFF_ES2 - OFF_ES}")

def load_e2(tag):
    e(f"s_cmp_lt_u32 s{sWave}, 8")
    e(f"s_cbranch_scc1 K2_E2{tag}")
    e(f"v_cmp_ne_u32 vcc, -1, v{REC}")
    e("s_nop 0")
    e("s_mov_b64 exec, vcc")
    e(f"s_cbranch_execz K2_E2X{tag}")
    e(f"buffer_load_dwordx4 v[{EA}:{EA+3}], v{EB}, s[{SW}:{SW+3}], s{sEs} offen")
    e(f"buffer_load_dwordx4 v[{EA+4}:{EA+7}], v{EB}, s[{SW}:{SW+3}], s{sEs} offen offset:16")
    lab(f"K2_E2X{tag}")
    e("s_mov_b64 exec, -1")
    lab(f"K2_E2{tag}")

def x_frag_addr(dst):
    e(f"v_lshrrev_b32 v{dst}, 2, v{vG4}")
    e(f"v_xor_b32 v{dst}, v{dst}, v{vL16}")
    e(f"v_lshlrev_b32 v{dst}, 4, v{dst}")
    e(f"v_lshl_add_u32 v{dst}, v{vL16}, 8, v{dst}")
    e(f"v_add_u32 v{dst}, {L_X}, v{dst}")
    for s in range(1, 4):
        e(f"v_xor_b32 v{dst+s}, {64*s}, v{dst}")

def gen_k2():
    begin(K2)
    e(f"s_cmp_ge_u32 s2, {T}")
    e("s_cbranch_scc1 K2_END")
    stamp_rt(0); stamp(1)
    e("s_load_dwordx4 s[60:63], s[0:1], 0")
    e("s_load_dwordx2 s[66:67], s[0:1], 48")
    e("s_load_dwordx2 s[68:69], s[0:1], 64")
    e(f"v_and_b32 v{vLane}, 63, v0")
    e(f"v_lshrrev_b32 v{tA}, 6, v0")
    e("s_mul_i32 s33, s2, 625")
    e(f"v_readfirstlane_b32 s{sWave}, v{tA}")
    e("s_add_u32 s34, s33, 625")
    e(f"s_lshr_b32 s{sN0}, s33, 4")
    e("s_lshr_b32 s34, s34, 4")
    e(f"s_sub_u32 s{sNc}, s34, s{sN0}")
    e(f"s_lshl_b32 s{sStage}, s{sWave}, 12")
    e(f"s_add_u32 s{sStage}, s{sStage}, {L_STAGE}")
    e(f"v_lshrrev_b32 v{vG4}, 4, v{vLane}")
    e(f"v_and_b32 v{vL16}, 15, v{vLane}")
    e("s_waitcnt lgkmcnt(0)")
    stamp(2)
    srd(SW, 68, 69, WS_SIZE)
    load_slots("a")
    e(f"v_lshlrev_b32 v{tC}, 4, v{vLane}")
    e(f"s_mov_b32 s45, {OFF_W3}")
    e(f"buffer_load_dwordx2 v[{QB[0]}:{QB[0]+1}], v{tC}, s[{SW}:{SW+3}], s45 offen")
    e(f"buffer_load_dwordx2 v[{QB[1]}:{QB[1]+1}], v{tC}, s[{SW}:{SW+3}], s45 offen offset:8")
    e(f"v_lshlrev_b32 v{tB}, 2, v{vLane}")
    e(f"s_mov_b32 s45, {OFF_OVC}")
    e(f"v_mov_b32 v{vOv+1}, 0")
    e(f"buffer_load_dword v{vOv}, v{tB}, s[{SW}:{SW+3}], s45 offen")
    e(f"v_cmp_gt_u32 vcc, 61, v{vLane}")
    e("s_and_saveexec_b64 s[46:47], vcc")
    e(f"buffer_load_dword v{vOv+1}, v{tB}, s[{SW}:{SW+3}], s45 offen offset:256")
    e("s_mov_b64 exec, s[46:47]")
    e(f"s_cmp_lt_u32 s{sWave}, 8")
    e("s_cbranch_scc1 K2_P1")
    srd(SX, 60, 61, N * 256)
    e(f"v_xor_b32 v{tA}, v{vG4}, v{vL16}")
    e(f"v_lshlrev_b32 v{tA}, 4, v{tA}")
    e(f"v_lshl_add_u32 v{tA}, v{vG4}, 8, v{tA}")
    e(f"s_and_b32 s45, s{sWave}, 3")
    e("s_lshl_b32 s45, s45, 6")
    e(f"v_xor_b32 v{tA}, s45, v{tA}")
    e(f"s_sub_u32 s46, s{sWave}, 8")
    e("s_lshl_b32 s46, s46, 10")
    e(f"s_add_u32 m0, s46, {L_X}")
    e(f"s_lshl_b32 s47, s{sN0}, 8")
    e("s_add_u32 s47, s47, s46")
    e(f"buffer_load_dwordx4 v{tA}, s[{SX}:{SX+3}], s47 offen lds")
    e(f"s_cmp_ge_u32 s{sWave}, 12")
    e("s_cbranch_scc1 K2_P0")
    e(f"s_add_u32 m0, s46, {L_X + 8192}")
    e("s_add_u32 s47, s47, 8192")
    e(f"buffer_load_dwordx4 v{tA}, s[{SX}:{SX+3}], s47 offen lds")
    lab("K2_P0")
    e("s_lshl_b32 s46, s46, 2")
    e(f"s_add_u32 s45, s46, {OFF_WF}")
    for s in range(4):
        e(f"buffer_load_dwordx4 v[{W2F+4*s}:{W2F+3+4*s}], v{tC}, s[{SW}:{SW+3}], s45 offen offset:{1024*s}")
    lab("K2_P1")
    srd(SP, 68, 69, N, stride=256)
    srd(SO, 66, 67, N * 256)
    lists_init()
    e(f"v_add_u32 v{tA}, {L_AGG}, v{tA}")
    e(f"ds_write_b128 v{tA}, v[{T4}:{T4+3}]")
    e(f"ds_write_b128 v{tA}, v[{T4}:{T4+3}] offset:16384")
    e(f"s_cmp_ge_u32 s{sWave}, 8")
    e("s_cbranch_scc1 K2_P2")
    e(f"ds_write_b128 v{tA}, v[{T4}:{T4+3}] offset:32768")
    lab("K2_P2")
    e(f"s_mov_b32 s{sC}, {hex(CSC)}")
    e(f"s_mov_b32 s{sC+1}, {hex(CSC)}")
    e(f"s_mov_b32 s{sEx}, 0x0f0f0f0f")
    e(f"s_mov_b32 s{sEx+1}, 0xf0f0f0f0")
    e(f"s_mov_b32 s{s320}, 320")
    e(f"s_mov_b32 s{sPhase}, 0")
    e(f"s_mov_b32 s{sFirst}, 1")
    e(f"v_lshrrev_b32 v{vR4}, 2, v{vL16}")
    e(f"v_and_b32 v{tD2}, 3, v{vLane}")
    e(f"v_lshlrev_b32 v{tA}, 2, v{vG4}")
    e(f"v_xor_b32 v{tA}, v{tA}, v{vL16}")
    e(f"v_lshlrev_b32 v{IDX+1}, 4, v{tA}")
    for q in range(1, 4): e(f"v_mov_b32 v{IDX+2*q+1}, v{IDX+1}")
    e(f"v_lshlrev_b32 v{tA}, 1, v{vG4}")
    e(f"v_lshlrev_b32 v{tB}, 2, v{vR4}")
    e(f"v_xor_b32 v{tA}, v{tA}, v{tB}")
    e(f"v_lshlrev_b32 v{tA}, 4, v{tA}")
    e(f"v_lshl_add_u32 v{tA}, v{vR4}, 8, v{tA}")
    e(f"v_lshl_add_u32 v{tA}, v{tD2}, 3, v{tA}")
    e(f"v_add_u32 v{vPT[0]}, s{sStage}, v{tA}")
    e(f"v_xor_b32 v{vPT[1]}, 128, v{vPT[0]}")
    e(f"v_lshlrev_b32 v{tA}, 5, v{vG4}")
    e(f"v_lshl_add_u32 v{tA}, v{tD2}, 3, v{tA}")
    e(f"v_add_u32 v{vQc}, {L_Q}, v{tA}")
    e(f"v_lshlrev_b32 v{vL8}, 3, v{vLane}")
    e(f"v_bfe_u32 v{tA}, v{vLane}, 3, 2")
    e(f"v_lshl_add_u32 v{vE4}, v{tA}, 2, v{tD2}")
    e(f"v_mov_b32 v{tB}, 0x3f80")
    e(f"v_and_b32 v{tC}, 1, v{vE4}")
    e(f"v_lshlrev_b32 v{tC}, 4, v{tC}")
    e(f"v_lshlrev_b32 v{tC}, v{tC}, v{tB}")
    e(f"v_lshrrev_b32 v{tE}, 1, v{vE4}")
    e(f"v_and_b32 v{tF}, 1, v{tA}")
    e(f"v_lshlrev_b32 v{tF}, 4, v{tF}")
    e(f"v_lshlrev_b32 v{tF}, v{tF}, v{tB}")
    e(f"v_lshrrev_b32 v{tA}, 1, v{tA}")
    e(f"s_not_b64 exec, s[{sEx}:{sEx+1}]")
    e(f"v_mov_b32 v{tE}, 99")
    e(f"v_mov_b32 v{tA}, 99")
    e("s_mov_b64 exec, -1")
    e(f"v_mov_b32 v{tB}, 0")
    for i in range(8):
        e(f"v_cmp_eq_u32 s[{64+2*(i%2)}:{65+2*(i%2)}], {i}, v{tE}") if False else None
    for i in range(8):
        e(f"v_cmp_eq_u32 vcc, {i}, v{tE}")
        e(f"v_mov_b32 v{AE + i%4}, 0" if i < 4 else f"v_mov_b32 v{ACC[0] + i%4}, 0")
        e("s_nop 0")
        e(f"v_cndmask_b32 v{ASEL+i}, v{tB}, v{tC}, vcc")
    for i in range(2):
        e(f"v_cmp_eq_u32 vcc, {i}, v{tA}")
        e("s_nop 1")
        e(f"v_cndmask_b32 v{OH+i}, v{tB}, v{tF}, vcc")
    e(f"v_lshlrev_b32 v{vE4}, 2, v{vE4}")
    e(f"v_lshlrev_b32 v{vR4}, 2, v{vR4}")
    e(f"v_lshlrev_b32 v{vG4}, 2, v{vG4}")
    stamp(3)
    e(f"s_cmp_lt_u32 s{sWave}, 8")
    e("s_cbranch_scc1 K2_P3")
    e("s_waitcnt vmcnt(5) lgkmcnt(0)")
    e("s_branch K2_P4")
    lab("K2_P3")
    e("s_waitcnt vmcnt(0) lgkmcnt(0)")
    lab("K2_P4")
    stamp(4)
    e(f"v_cmp_ne_u32 s[{sOv0}:{sOv0+1}], 0, v{vOv}")
    e(f"v_cmp_ne_u32 s[{sOv1}:{sOv1+1}], 0, v{vOv+1}")
    e("s_nop 0")
    e(f"s_or_b64 s[46:47], s[{sOv0}:{sOv0+1}], s[{sOv1}:{sOv1+1}]")
    e(f"s_cselect_b32 s{sLast}, 0, 1")
    load_e2("a")
    lab("K2_ROUND")
    e(f"v_cmp_ne_u32 s[{sAny}:{sAny+1}], -1, v{REC}")
    e(f"v_mov_b32 v{tA}, 1")
    e("s_barrier")
    e(f"s_cmp_eq_u64 s[{sAny}:{sAny+1}], 0")
    e("s_cbranch_scc1 K2_C1")
    for j in range(4):
        e(f"v_cmp_ne_u32 vcc, -1, v{REC+j}")
        e(f"v_bfe_u32 v{NODE+j}, v{REC+j}, 14, 6")
        e(f"v_lshlrev_b32 v{tB}, 2, v{NODE+j}")
        e("s_mov_b64 exec, vcc")
        e(f"ds_add_rtn_u32 v{RANK+j}, v{tB}, v{tA} offset:{L_CNT}")
        e("s_mov_b64 exec, -1")
    lab("K2_C1")
    e(f"v_lshlrev_b32 v{tB}, 2, v{vLane}")
    e(f"s_cmp_lt_u32 s{sWave}, 8")
    e("s_cbranch_scc1 K2_C1B")
    e("s_waitcnt vmcnt(0)")
    lab("K2_C1B")
    e("s_waitcnt lgkmcnt(0)")
    e("s_barrier")
    stamp(5)
    e(f"ds_read_b32 v{tD2}, v{tB} offset:{L_CNT}")
    e("s_waitcnt lgkmcnt(0)")
    e(f"v_add_u32 v{tD2}, 3, v{tD2}")
    e(f"v_lshrrev_b32 v{tD2}, 2, v{tD2}")
    e(f"v_mov_b32 v{tE}, v{tD2}")
    e("s_nop 1")
    for sh in (1, 2, 4, 8):
        e(f"v_add_u32_dpp v{tE}, v{tE}, v{tE} row_shr:{sh} row_mask:0xf bank_mask:0xf bound_ctrl:0")
        e("s_nop 1")
    e(f"v_add_u32_dpp v{tE}, v{tE}, v{tE} row_bcast:15 row_mask:0xa bank_mask:0xf")
    e("s_nop 1")
    e(f"v_add_u32_dpp v{tE}, v{tE}, v{tE} row_bcast:31 row_mask:0xc bank_mask:0xf")
    e("s_nop 1")
    e(f"v_readlane_b32 s{sQt}, v{tE}, 63")
    e(f"v_sub_u32 v{tE}, v{tE}, v{tD2}")
    e(f"v_lshlrev_b32 v{tE}, 2, v{tE}")
    e("s_nop 1")
    e(f"s_cmp_gt_u32 s{sQt}, 512")
    e("s_cbranch_scc1 K2_SPLIT")
    e(f"s_cmp_eq_u64 s[{sAny}:{sAny+1}], 0")
    e("s_cbranch_scc1 K2_C2")
    for j in range(4):
        e(f"v_lshlrev_b32 v{tB}, 2, v{NODE+j}")
        e(f"ds_bpermute_b32 v{POS+j}, v{tB}, v{tE}")
    for j in range(4):
        e(f"v_cmp_ne_u32 vcc, -1, v{REC+j}")
        e(f"v_and_b32 v{tA}, 0x3fff, v{REC+j}")
        e(f"v_and_b32 v{tC}, 3, v{RANK+j}")
        e(f"v_cmp_eq_u32 s[46:47], 0, v{tC}")
        e(f"s_waitcnt lgkmcnt({3 - j + 3 * j})")
        e(f"v_add_u32 v{tB}, v{POS+j}, v{RANK+j}")
        e(f"v_lshlrev_b32 v{POS+j}, 2, v{tB}")
        e(f"v_lshlrev_b32 v{tC}, 3, v{tB}")
        e("s_mov_b64 exec, vcc")
        e(f"ds_write_b32 v{POS+j}, v{tA} offset:{L_IDX}")
        e(f"ds_write_b64 v{tC}, v[{EA+2*j}:{EA+2*j+1}] offset:{L_EL}")
        e("s_and_b64 exec, vcc, s[46:47]")
        e(f"ds_write_b32 v{tB}, v{NODE+j} offset:{L_QN}")
        e("s_mov_b64 exec, -1")
    lab("K2_C2")
    e(f"s_cmp_lt_u32 s{sWave}, 8")
    e("s_cbranch_scc1 K2_NOQ")
    e(f"s_cmp_eq_u32 s{sFirst}, 0")
    e("s_cbranch_scc1 K2_NOQ")
    x_frag_addr(T4)
    XQ = [80, 84, 88]
    QA = [92, 28, 30]
    QA = [26 + 2, 104, 108]
    for s in range(4):
        for nt in range(3):
            e(f"ds_read_b128 v[{XQ[nt]}:{XQ[nt]+3}], v{T4+s} offset:{4096*nt}")
        for nt in range(3):
            e(f"s_waitcnt lgkmcnt({2-nt})")
            d = vr(QA[nt], 4)
            c = "0" if s == 0 else d
            e(f"v_mfma_f32_16x16x32_bf16 {d}, v[{W2F+4*s}:{W2F+3+4*s}], v[{XQ[nt]}:{XQ[nt]+3}], {c}")
    e(f"s_mov_b32 s46, {hex(NLOG2E)}")
    e(f"s_mov_b32 s47, {hex(NLOG2E)}")
    e(f"v_mul_u32_u24 v{tA}, 320, v{vL16}")
    e(f"v_lshl_add_u32 v{tA}, v{vG4}, 1, v{tA}")
    e(f"s_lshl_b32 s45, s{sWave}, 5")
    e(f"s_add_u32 s45, s45, {L_Q - 256}")
    e(f"v_add_u32 v{tA}, s45, v{tA}")
    e("s_nop 1")
    for nt in range(3):
        a = QA[nt]
        e(f"v_pk_mul_f32 v[{a}:{a+1}], v[{a}:{a+1}], s[46:47]")
        e(f"v_pk_mul_f32 v[{a+2}:{a+3}], v[{a+2}:{a+3}], s[46:47]")
        e(f"v_cvt_pk_bf16_f32 v{a}, v{a}, v{a+1}")
        e(f"v_cvt_pk_bf16_f32 v{a+1}, v{a+2}, v{a+3}")
        e(f"ds_write_b64 v{tA}, v[{a}:{a+1}] offset:{5120*nt}")
    e(f"v_lshlrev_b32 v{vL8}, 3, v{vLane}")
    lab("K2_NOQ")
    e(f"s_mov_b32 s{sFirst}, 0")
    e(f"s_add_u32 s45, s{sQt}, 3")
    e("s_lshr_b32 s45, s45, 2")
    e("s_lshr_b32 s46, s45, 4")
    e("s_and_b32 s45, s45, 15")
    e(f"s_mul_i32 s{sS0}, s46, s{sWave}")
    e(f"s_min_u32 s47, s45, s{sWave}")
    e(f"s_add_u32 s{sS0}, s{sS0}, s47")
    e(f"s_cmp_lt_u32 s{sWave}, s45")
    e(f"s_addc_u32 s{sNs}, s46, 0")
    e(f"s_mov_b32 s{sRem}, s{sNs}")
    e(f"s_lshl_b32 s45, s{sS0}, 6")
    e(f"v_add_u32 v{vLi}, s45, v{vG4}")
    e(f"v_add_u32 v{vLv}, s45, v{vE4}")
    e(f"v_lshlrev_b32 v{vLe}, 1, v{vLv}")
    e(f"v_add_u32 v{vLe}, {L_EL}, v{vLe}")
    e(f"s_lshl_b32 s45, s{sS0}, 4")
    e(f"s_add_u32 s45, s45, {L_QN}")
    e(f"v_add_u32 v{vLq}, s45, v{vR4}")
    e(f"v_lshl_add_u32 v{tB}, v{vLane}, 2, s45")
    e("s_waitcnt lgkmcnt(0)")
    e("s_barrier")
    stamp(6)
    for x in idx_reads(0): e(x)
    for x in qn_read(0): e(x)
    e(f"ds_read2_b32 v[{tC}:{tC+1}], v{tB} offset0:0 offset1:1")
    for x in G_guard(): e(x)
    e("s_waitcnt lgkmcnt(2)")
    for q in range(4):
        for x in G_op(q): e(x)
    e("s_waitcnt lgkmcnt(0)")
    for x in vq_op(): e(x)
    e(f"s_lshl_b32 s45, s{sNs}, 2")
    e(f"v_cmp_ne_u32 s[{sMask}:{sMask+1}], v{tC}, v{tC+1}")
    e(f"v_cmp_gt_u32 vcc, s45, v{vLane}")
    e(f"v_lshlrev_b32 v{vNode}, 10, v{tC}")
    e(f"v_add_u32 v{vNode}, {L_AGG}, v{vNode}")
    e(f"s_and_b64 s[{sMask}:{sMask+1}], s[{sMask}:{sMask+1}], vcc")
    e("s_sub_u32 s45, s45, 1")
    e(f"s_bitset1_b64 s[{sMask}:{sMask+1}], s45")
    e(f"s_mov_b32 s{sQi}, 0")
    stamp(7)
    e(f"s_cmp_eq_u32 s{sNs}, 0")
    e("s_cbranch_scc1 K2_REND")
    for x in A_reads(0): e(x)
    for x in idx_reads(1): e(x)
    for x in qn_read(1): e(x)
    e("s_waitcnt vmcnt(0)")
    stamp(8)
    for x in T_reads(): e(x)
    e("s_waitcnt lgkmcnt(10)")
    for x in mask_ops(): e(x)
    for x in G_guard(): e(x)
    e("s_waitcnt lgkmcnt(0)")
    for x in M_ops(0): e(x)
    for q in range(4):
        for x in G_op(q): e(x)
    e("s_nop 3")
    for x in exps(0, 0): e(x)
    stamp(9)
    e(".p2align 6")
    lab("K2_LOOP")
    if 'noprio' not in EXP:
        e("s_setprio 0")
        e(f"s_cmp_lt_u32 s{sNs}, 2")
        e("s_cbranch_scc1 K2_PR")
        e("s_setprio 1")
        e(f"s_cmp_lt_u32 s{sNs}, 3")
        e("s_cbranch_scc1 K2_PR")
        e("s_setprio 2")
        e(f"s_cmp_lt_u32 s{sNs}, 4")
        e("s_cbranch_scc1 K2_PR")
        e("s_setprio 3")
        lab("K2_PR")
    mh = M_ops(1); ml = M_ops(0)
    unit(0, 0, [mh[0]], ["s_waitcnt lgkmcnt(0)"] + vq_op() + A_reads(1) + idx_reads(2))
    unit(0, 1, [mh[1]], ["s_waitcnt lgkmcnt(0)"] + mask_ops())
    unit(0, 2, [mh[2]], ["s_waitcnt vmcnt(0)"] + T_reads())
    unit(0, 3, G_guard(), [f"v_add_u32 v{vLi}, 64, v{vLi}", f"v_add_u32 v{vLv}, 64, v{vLv}"])
    unit(1, 0, ["s_waitcnt lgkmcnt(0)", ml[0]], G_op(0) + G_op(1))
    unit(1, 1, [ml[1]], G_op(2) + G_op(3))
    unit(1, 2, [ml[2]], qn_read(2) + [f"v_add_u32 v{vLe}, 128, v{vLe}"])
    unit(1, 3, [f"s_sub_u32 s{sNs}, s{sNs}, 1"], [f"v_add_u32 v{vLq}, 16, v{vLq}"])
    e(f"s_lshr_b64 s[{sMask}:{sMask+1}], s[{sMask}:{sMask+1}], 4")
    e(f"s_add_u32 s{sQi}, s{sQi}, 4")
    e(f"s_cmp_lg_u32 s{sNs}, 0")
    e("s_cbranch_scc1 K2_LOOP")
    lab("K2_REND")
    stamp(10)
    e(f"s_cmp_eq_u32 s{sLast}, 0")
    e("s_cbranch_scc1 K2_MORE")
    lab("K2_FIN")
    UA = 80
    WU = 2
    XE = 34
    e(f"s_cmp_ge_u32 s{sWave}, 8")
    e("s_cbranch_scc1 K2_F1")
    e(f"v_lshlrev_b32 v{tC}, 4, v{vLane}")
    e(f"s_lshl_b32 s45, s{sWave}, 12")
    e(f"s_add_u32 s45, s45, {OFF_WF + 32768}")
    e("s_nop 7")
    for s in range(4):
        e(f"buffer_load_dwordx4 v[{WU+4*s}:{WU+3+4*s}], v{tC}, s[{SW}:{SW+3}], s45 offen offset:{1024*s}")
    e("s_add_u32 s45, s45, 32768")
    for s in range(4):
        e(f"buffer_load_dwordx4 v[{WU+16+4*s}:{WU+19+4*s}], v{tC}, s[{SW}:{SW+3}], s45 offen offset:{1024*s}")
    x_frag_addr(T4)
    XR = [34, 38, 42, 46, 50, 54, 58, 62, 66, 70, 74, 92]
    e("s_waitcnt lgkmcnt(0)")
    for s in range(4):
        for nt in range(3):
            b = XR[s * 3 + nt]
            e(f"ds_read_b128 v[{b}:{b+3}], v{T4+s} offset:{4096*nt}")
    for s in range(4):
        e(f"s_waitcnt vmcnt({7-s}) lgkmcnt({9-3*s})")
        for nt in range(3):
            b = XR[s * 3 + nt]
            d = vr(UA + 4 * nt, 4)
            c = "0" if s == 0 else d
            e(f"v_mfma_f32_16x16x32_bf16 {d}, v[{WU+4*s}:{WU+3+4*s}], v[{b}:{b+3}], {c}")
    lab("K2_F1")
    e(f"v_lshlrev_b32 v{tA}, 4, v0")
    e(f"v_add_u32 v{tA}, {L_AGG}, v{tA}")
    e(f"s_mul_i32 s45, s{sWave}, 272")
    e(f"s_add_u32 s45, s45, {L_Q}")
    e(f"v_lshl_add_u32 v{tB}, v{vLane}, 2, s45")
    e(f"s_mov_b32 s46, {hex(FSC)}")
    e(f"s_mov_b32 s47, {hex(FSC)}")
    e("s_waitcnt lgkmcnt(0)")
    e("s_barrier")
    stamp(11)
    CV = [96, 100, 104]
    e(f"ds_read_b128 v[{CV[0]}:{CV[0]+3}], v{tA}")
    e(f"ds_read_b128 v[{CV[1]}:{CV[1]+3}], v{tA} offset:16384")
    def conv(k):
        b = CV[k]
        e(f"v_cvt_f32_f64 v{b}, v[{b}:{b+1}]")
        e(f"v_cvt_f32_f64 v{b+1}, v[{b+2}:{b+3}]")
        e(f"v_pk_mul_f32 v[{b}:{b+1}], v[{b}:{b+1}], s[46:47]")
        e(f"v_cvt_pk_bf16_f32 v{b}, v{b}, v{b+1}")
        e(f"ds_write_b32 v{tB}, v{b} offset:{16*272*k}")
    e(f"s_cmp_ge_u32 s{sWave}, 8")
    e("s_cbranch_scc1 K2_F2")
    e(f"ds_read_b128 v[{CV[2]}:{CV[2]+3}], v{tA} offset:32768")
    e("s_waitcnt lgkmcnt(0)")
    conv(2)
    lab("K2_F2")
    e("s_waitcnt lgkmcnt(0)")
    conv(0); conv(1)
    e(f"v_mul_u32_u24 v{tC}, 272, v{vL16}")
    e(f"v_lshl_add_u32 v{tC}, v{vG4}, 2, v{tC}")
    e("s_waitcnt lgkmcnt(0)")
    e("s_barrier")
    e(f"s_cmp_ge_u32 s{sWave}, 8")
    e("s_cbranch_scc1 K2_XW")
    for s in range(4):
        for nt in range(3):
            b = XR[s * 3 + nt]
            e(f"ds_read_b128 v[{b}:{b+3}], v{tC} offset:{L_Q + 16*272*nt + 64*s}")
    e(f"v_lshlrev_b32 v{tA}, 8, v{vL16}")
    e(f"v_lshl_add_u32 v{tA}, v{vG4}, 1, v{tA}")
    e(f"s_lshl_b32 s45, s{sN0}, 8")
    e(f"s_lshl_b32 s46, s{sWave}, 5")
    e("s_add_u32 s45, s45, s46")
    e(f"s_mov_b32 s46, {hex(NLOG2E)}")
    e("s_waitcnt vmcnt(0)")
    for s in range(4):
        e(f"s_waitcnt lgkmcnt({9 - 3*s})")
        for nt in range(3):
            b = XR[s * 3 + nt]
            d = vr(UA + 4 * nt, 4)
            e(f"v_mfma_f32_16x16x32_bf16 {d}, v[{WU+16+4*s}:{WU+19+4*s}], v[{b}:{b+3}], {d}")
    e(f"s_sub_u32 s47, s{sNc}, 32")
    e(f"v_cmp_gt_u32 vcc, s47, v{vL16}")
    e("s_nop 6")
    O = 2
    for i in range(12): e(f"v_mul_f32 v{O+i}, s46, v{UA+i}")
    for i in range(12): e(f"v_exp_f32 v{O+i}, v{O+i}")
    for i in range(12): e(f"v_add_f32 v{O+i}, 1.0, v{O+i}")
    for i in range(12): e(f"v_rcp_f32 v{O+i}, v{O+i}")
    for i in range(12): e(f"v_mul_f32 v{O+i}, v{O+i}, v{UA+i}")
    for nt in range(3):
        a = O + 4 * nt
        e(f"v_cvt_pk_bf16_f32 v{a}, v{a}, v{a+1}")
        e(f"v_cvt_pk_bf16_f32 v{a+1}, v{a+2}, v{a+3}")
        if nt == 2:
            e("s_mov_b64 exec, vcc")
        e(f"buffer_store_dwordx2 v[{a}:{a+1}], v{tA}, s[{SO}:{SO+3}], s45 offen")
        if nt < 2:
            e("s_add_u32 s45, s45, 4096")
    lab("K2_XW")
    if PROF: e("s_waitcnt vmcnt(0)")
    stamp(12); stamp_rt(13)
    stamp_dump(SW, sWave, 0x100000)
    lab("K2_END")
    e("s_endpgm")
    for site in range(8):
        p, k = site // 4, site % 4
        lab(f"K2_FL{site}")
        e(f"s_add_u32 s45, s{sQi}, {k}")
        e(f"v_add_f32 v{vF}, v{ACC[p]}, v{ACC[p]+1}")
        e(f"v_readlane_b32 s45, v{vNode}, s45")
        e(f"v_cvt_f64_f32 v[{vF}:{vF+1}], v{vF}")
        e(f"v_mov_b32 v{ACC[p]}, 0")
        e(f"v_add_u32 v{vFa}, s45, v{vL8}")
        e(f"v_mov_b32 v{ACC[p]+1}, 0")
        e(f"ds_add_f64 v{vFa}, v[{vF}:{vF+1}] offset:{512*p}")
        e(f"s_branch K2_RT{site}")
    lab("K2_SPLIT")
    e(f"s_mov_b32 s{sLast}, 0")
    e("s_waitcnt vmcnt(0)")
    e("s_barrier")
    e("s_branch K2_PAIR")
    lab("K2_MORE")
    e("s_waitcnt vmcnt(0) lgkmcnt(0)")
    e("s_barrier")
    e(f"s_cmp_eq_u32 s{sPhase}, 0")
    e("s_cbranch_scc1 K2_OVSTART")
    e(f"s_cmp_ge_u32 s{sPhase}, 4")
    e("s_cbranch_scc1 K2_OVNEXT")
    lab("K2_PAIR")
    e(f"s_add_u32 s{sPhase}, s{sPhase}, 1")
    load_slots("b")
    lists_init()
    e("s_waitcnt vmcnt(0)")
    load_e2("b")
    e("s_waitcnt vmcnt(0)")
    for k in range(4):
        e(f"s_cmp_eq_u32 s{sPhase}, {k+1}")
        e(f"s_cbranch_scc0 K2_PK{k}")
        e(f"v_mov_b32 v{REC}, v{REC+k}")
        e(f"v_mov_b32 v{EA}, v{EA+2*k}")
        e(f"v_mov_b32 v{EA+1}, v{EA+2*k+1}")
        lab(f"K2_PK{k}")
    for j in range(1, 4): e(f"v_mov_b32 v{REC+j}, -1")
    e("s_waitcnt lgkmcnt(0)")
    e("s_branch K2_ROUND")
    lab("K2_OVSTART")
    e(f"s_mov_b32 s{sPhase}, 4")
    lab("K2_OVNEXT")
    e(f"s_cmp_eq_u32 s{sPhase}, 4")
    e("s_cbranch_scc1 K2_OVPICK")
    e(f"s_add_u32 s{sOvS}, s{sOvS}, 1024")
    e(f"s_cmp_lt_u32 s{sOvS}, s{sOvC}")
    e("s_cbranch_scc1 K2_OVLOAD")
    lab("K2_OVPICK")
    e(f"s_mov_b32 s{sPhase}, 5")
    e(f"s_mov_b32 s{sOvS}, 0")
    e(f"s_cmp_lg_u64 s[{sOv0}:{sOv0+1}], 0")
    e("s_cbranch_scc0 K2_OVP1")
    e(f"s_ff1_i32_b64 s{sOvG}, s[{sOv0}:{sOv0+1}]")
    e(f"s_bitset0_b64 s[{sOv0}:{sOv0+1}], s{sOvG}")
    e(f"v_readlane_b32 s{sOvC}, v{vOv}, s{sOvG}")
    e("s_branch K2_OVLOAD")
    lab("K2_OVP1")
    e(f"s_cmp_lg_u64 s[{sOv1}:{sOv1+1}], 0")
    e("s_cbranch_scc0 K2_FIN")
    e(f"s_ff1_i32_b64 s{sOvG}, s[{sOv1}:{sOv1+1}]")
    e(f"s_bitset0_b64 s[{sOv1}:{sOv1+1}], s{sOvG}")
    e(f"v_readlane_b32 s{sOvC}, v{vOv+1}, s{sOvG}")
    e(f"s_add_u32 s{sOvG}, s{sOvG}, 64")
    lab("K2_OVLOAD")
    e(f"s_mul_i32 s45, s{sOvG}, {CH*16}")
    e(f"s_lshl_b32 s46, s{sOvS}, 4")
    e("s_add_u32 s45, s45, s46")
    e(f"s_add_u32 s45, s45, {OFF_OVF}")
    e(f"v_lshlrev_b32 v{tB}, 4, v0")
    e(f"buffer_load_dwordx4 v[{REC}:{REC+3}], v{tB}, s[{SW}:{SW+3}], s45 offen")
    lists_init()
    e(f"v_add_u32 v{tB}, s{sOvS}, v0")
    e("s_waitcnt vmcnt(0)")
    e(f"v_cmp_gt_u32 vcc, s{sOvC}, v{tB}")
    e(f"v_cmp_eq_u32 s[46:47], s2, v{REC+1}")
    e("s_and_b64 vcc, vcc, s[46:47]")
    e(f"v_mov_b32 v{tC}, -1")
    e(f"v_cndmask_b32 v{REC}, v{tC}, v{REC}, vcc")
    e(f"v_mov_b32 v{EA}, v{REC+2}")
    e(f"v_mov_b32 v{EA+1}, v{REC+3}")
    for j in range(1, 4): e(f"v_mov_b32 v{REC+j}, -1")
    e("s_waitcnt lgkmcnt(0)")
    e("s_branch K2_ROUND")

gen_k1()
K1ST = os.environ.get("K1ST", "sc1")
if K1ST == "plain": K1ST = ""
if K1ST:
    for i, l in enumerate(out):
        if "buffer_store" in l and "s70" not in l and "v56" not in l:
            out[i] = ("    s_nop 0" if K1ST == "none" else l + " " + K1ST)
gen_k2()
text = HEADER + "\n".join(out) + "\n" + kd(K1, 128, 100 if PROF else 48) + kd(K2, K2_VGPR, 100 if PROF else 72)
path = sys.argv[1] if len(sys.argv) > 1 else "standalone__mpnn_edge_mlp__graph.s"
open(path, "w").write(text)
print("wrote", path, len(out), "lines; K2 LDS end", L_END)
```

```python
import sys

N = 10000
E = 320000
G = 125
CH = 2560
T = 256
OFF_SLOT = 0x280000
OFF_WF = 0x680000
OFF_W3 = 0x698000
OFF_OVC = 0x6A0000
OFF_OVF = 0x6B0000
OFF_ES = 0xC00000
OFF_ES2 = 0x1000000
WS_SIZE = 0x2000000
NLOG2E = 0xBFB8AA3B
CSC = 0x2F800000
FSC = 0xAF317218
MAGIC625 = 6871948

import os
PROF = int(os.environ.get("PROF", "0"))
OFF_DBG = 0x1800000
out = []
def stamp(i):
    if PROF == 1:
        e(f"s_memtime s[{72+2*i}:{73+2*i}]")
        e("s_waitcnt lgkmcnt(0)")
def stamp_rt(i):
    if PROF:
        e(f"s_memrealtime s[{72+2*i}:{73+2*i}]")
        e("s_waitcnt lgkmcnt(0)")
def stamp_rt2(i):
    if PROF == 2:
        e(f"s_memrealtime s[{72+2*i}:{73+2*i}]")
        e("s_waitcnt lgkmcnt(0)")
def stamp_dump(srdw, wave, koff, nst=14, words=()):
    if PROF:
        e("s_mov_b64 exec, -1")
        e("v_mov_b32 v20, 0")
        for i in range(nst):
            e(f"v_writelane_b32 v20, s{72+2*i}, {i}")
        e(f"s_lshl_b32 s70, s2, 4")
        e(f"s_add_u32 s70, s70, s{wave}")
        e("s_lshl_b32 s70, s70, 6")
        e(f"s_add_u32 s70, s70, {OFF_DBG + koff}")
        e("v_mbcnt_lo_u32_b32 v21, -1, 0")
        e("v_mbcnt_hi_u32_b32 v21, -1, v21")
        e("v_lshlrev_b32 v21, 2, v21")
        e("s_mov_b64 exec, 0xffff")
        e(f"buffer_store_dword v20, v21, s[{srdw}:{srdw+3}], s70 offen")
def e(s=""):
    out.append("    " + s if s and not s.endswith(":") else s)
def lab(s):
    out.append(s + ":")
def vr(b, n):
    return f"v[{b}:{b+n-1}]" if n > 1 else f"v{b}"
def sr(b, n):
    return f"s[{b}:{b+n-1}]" if n > 1 else f"s{b}"
def srd(d, lo, hi, size, stride=0):
    e(f"s_mov_b32 s{d}, s{lo}")
    if stride:
        e(f"s_or_b32 s{d+1}, s{hi}, {hex(stride << 16)}")
    else:
        e(f"s_mov_b32 s{d+1}, s{hi}")
    e(f"s_mov_b32 s{d+2}, {size}")
    e(f"s_mov_b32 s{d+3}, 0x00020000")

K1 = "mpnn_prep_kernel"
K2 = "mpnn_main_kernel"
K1_LDS = 102400
K2_LDS = 162560

HEADER = f"""; Kernarg layout for this problem (72 bytes, ptrs only, base s[0:1]):
; @launch kernel={K1} grid=(253,1,1) block=(640,1,1) lds={K1_LDS}
; @launch kernel={K2} grid=(256,1,1) block=(1024,1,1) lds={K2_LDS}
.amdgcn_target "amdgcn-amd-amdhsa--gfx950"
"""

def kd(name, vgpr, sgpr):
    acc = (vgpr + 3) // 4 * 4
    return f""".section .rodata,"a"
.p2align 6
.amdhsa_kernel {name}
  .amdhsa_next_free_vgpr {vgpr}
  .amdhsa_next_free_sgpr {sgpr}
  .amdhsa_accum_offset {acc}
  .amdhsa_group_segment_fixed_size 0
  .amdhsa_kernarg_size 72
  .amdhsa_user_sgpr_count 2
  .amdhsa_user_sgpr_kernarg_segment_ptr 1
  .amdhsa_system_sgpr_workgroup_id_x 1
.end_amdhsa_kernel
"""

def begin(name):
    out.append(".text")
    out.append(f".globl {name}")
    out.append(".p2align 8")
    out.append(f".type {name},@function")
    lab(name)

def gen_k1():
    begin(K1)
    e("s_cmp_ge_u32 s2, 253")
    e("s_cbranch_scc1 K1_END")
    stamp_rt(0); stamp(1)
    e("s_load_dwordx4 s[4:7], s[0:1], 0")
    e("s_load_dwordx4 s[8:11], s[0:1], 16")
    e("s_load_dwordx4 s[12:15], s[0:1], 32")
    e("s_load_dwordx2 s[16:17], s[0:1], 64")
    e("v_and_b32 v2, 63, v0")
    e("v_lshrrev_b32 v3, 6, v0")
    e("v_lshlrev_b32 v1, 4, v0")
    e("v_readfirstlane_b32 s32, v3")
    e("s_cmp_ge_u32 s2, 125")
    e("s_cbranch_scc1 K1_GEMM")
    LE = 36864
    e("s_mul_i32 s3, s2, 10240")
    e("v_lshlrev_b32 v57, 5, v0")
    e("s_waitcnt lgkmcnt(0)")
    stamp(2)
    srd(24, 10, 11, E * 4)
    srd(28, 8, 9, E * 4)
    e("buffer_load_dwordx4 v[4:7], v1, s[24:27], s3 offen")
    e("buffer_load_dwordx4 v[8:11], v1, s[28:31], s3 offen")
    srd(44, 6, 7, E * 8)
    e("s_lshl_b32 s3, s3, 1")
    srd(20, 16, 17, WS_SIZE)
    for i in range(4):
        e(f"v_mov_b32 v{12+i}, -1")
    e("v_mov_b32 v16, 0")
    e("v_lshlrev_b32 v17, 2, v0")
    e("ds_write_b128 v1, v[12:15]")
    e("ds_write_b128 v1, v[12:15] offset:10240")
    e("ds_write_b128 v1, v[12:15] offset:20480")
    e("ds_write_b32 v17, v16 offset:32768")
    e("s_cmp_ge_u32 s32, 2")
    e("s_cbranch_scc1 K1_S1")
    e("ds_write_b128 v1, v[12:15] offset:30720")
    lab("K1_S1")
    e(f"s_mov_b32 s33, {MAGIC625}")
    e("v_mov_b32 v18, 1")
    e("s_waitcnt lgkmcnt(0)")
    e("s_barrier")
    e("buffer_load_dwordx4 v[60:63], v57, s[44:47], s3 offen")
    e("buffer_load_dwordx4 v[64:67], v57, s[44:47], s3 offen offset:16")
    stamp(3)
    e("s_waitcnt vmcnt(3)")
    stamp(4)
    for j in range(4):
        e(f"v_lshl_add_u32 v16, v{4+j}, 4, 15")
        e(f"v_mul_hi_u32_u24 v{20+j}, s33, v16")
        e(f"v_lshlrev_b32 v17, 2, v{20+j}")
        e(f"ds_add_rtn_u32 v{28+j}, v17, v18 offset:32768")
    for j in range(4):
        e(f"v_mul_u32_u24 v16, 625, v{20+j}")
        e("v_lshrrev_b32 v16, 4, v16")
        e(f"v_sub_u32 v{32+j}, v{4+j}, v16")
        e(f"v_lshlrev_b32 v{36+j}, 7, v{20+j}")
    e("s_waitcnt vmcnt(2)")
    for j in range(4):
        e(f"v_lshl_or_b32 v{32+j}, v{32+j}, 14, v{8+j}")
    e("s_waitcnt lgkmcnt(0)")
    for j in range(4):
        e(f"v_lshl_add_u32 v{36+j}, v{28+j}, 2, v{36+j}")
        e(f"v_lshlrev_b32 v{24+j}, 1, v{36+j}")
    e("v_max_u32 v16, v28, v29")
    e("v_max3_u32 v16, v16, v30, v31")
    e("v_cmp_lt_u32 vcc, 31, v16")
    e("s_cbranch_vccnz K1_SLOW")
    for j in range(4):
        e(f"ds_write_b32 v{36+j}, v{32+j}")
    e("s_waitcnt vmcnt(0)")
    for j in range(4):
        e(f"ds_write_b64 v{24+j}, v[{60+2*j}:{61+2*j}] offset:{LE}")
    lab("K1_S2")
    e("v_lshrrev_b32 v19, 3, v0")
    e("v_mul_u32_u24 v16, 16000, v19")
    e("v_and_b32 v17, 7, v0")
    e("v_lshlrev_b32 v17, 4, v17")
    e("v_add_u32 v16, v17, v16")
    e("v_lshl_add_u32 v57, v19, 8, v17")
    e(f"v_add_u32 v57, {LE}, v57")
    e("v_lshlrev_b32 v19, 2, v19")
    e("s_lshl_b32 s34, s2, 7")
    e(f"s_add_u32 s34, s34, {OFF_SLOT}")
    e("s_add_u32 s35, s34, 1280000")
    e("s_add_u32 s36, s34, 2560000")
    e("s_add_u32 s37, s34, 3840000")
    e("s_waitcnt lgkmcnt(0)")
    stamp(5)
    e("s_barrier")
    stamp(6)
    D = OFF_ES - OFF_SLOT
    for k in range(3):
        e(f"ds_read_b128 v[{40+4*k}:{43+4*k}], v1 offset:{10240*k}")
        e(f"ds_read_b128 v[{68+4*k}:{71+4*k}], v57 offset:{20480*k}")
    for k in range(3):
        e(f"ds_read_b32 v{4+k}, v19 offset:{32768 + 320*k}")
    e("v_mov_b32 v7, 0")
    e("s_cmp_ge_u32 s32, 2")
    e("s_cbranch_scc1 K1_S3")
    e("ds_read_b128 v[52:55], v1 offset:30720")
    e("ds_read_b128 v[80:83], v57 offset:61440")
    e(f"ds_read_b32 v7, v19 offset:{32768 + 960}")
    e("v_mov_b32 v17, 0")
    e("ds_read_b32 v56, v17 offset:33792")
    e(f"s_add_u32 s39, s37, {D}")
    e("s_waitcnt lgkmcnt(0)")
    e("buffer_store_dwordx4 v[52:55], v16, s[20:23], s37 offen")
    e("buffer_store_dwordx4 v[80:83], v16, s[20:23], s39 offen")
    e("s_lshl_b32 s38, s2, 2")
    e(f"s_add_u32 s38, s38, {OFF_OVC}")
    e("v_cmp_eq_u32 vcc, 0, v0")
    e("s_and_saveexec_b64 s[40:41], vcc")
    e("s_cbranch_execz K1_S4")
    e("buffer_store_dword v56, v17, s[20:23], s38 offen")
    lab("K1_S4")
    e("s_mov_b64 exec, s[40:41]")
    lab("K1_S3")
    for k in range(3):
        e(f"s_add_u32 s39, s{34+k}, {D}")
        e(f"s_waitcnt lgkmcnt({8-2*k})")
        e(f"buffer_store_dwordx4 v[{40+4*k}:{43+4*k}], v16, s[20:23], s{34+k} offen")
        e(f"s_waitcnt lgkmcnt({7-2*k})")
        e(f"buffer_store_dwordx4 v[{68+4*k}:{71+4*k}], v16, s[20:23], s39 offen")
    e("s_waitcnt lgkmcnt(0)")
    for k in range(4):
        e(f"v_cmp_lt_u32 vcc, 16, v{4+k}")
        e("s_and_saveexec_b64 s[40:41], vcc")
        e(f"s_cbranch_execz K1_E{k}")
        e(f"ds_read_b128 v[8:11], v57 offset:{20480*k + 128}")
        e(f"s_add_u32 s39, s{34+k}, {OFF_ES2 - OFF_SLOT}")
        e("s_waitcnt lgkmcnt(0)")
        e("buffer_store_dwordx4 v[8:11], v16, s[20:23], s39 offen")
        e("s_nop 1")
        lab(f"K1_E{k}")
        e("s_mov_b64 exec, s[40:41]")
    stamp(7)
    if PROF: e("s_waitcnt vmcnt(0)")
    stamp(8); stamp_rt(9)
    stamp_dump(20, 32, 0, words=[(0,0,1),(1,9,0),(8,9,0),(10,0,0)])
    e("s_endpgm")
    lab("K1_SLOW")
    e(f"s_mul_i32 s39, s2, {CH * 16}")
    e(f"s_add_u32 s39, s39, {OFF_OVF}")
    e("v_mov_b32 v17, 0")
    e("s_waitcnt vmcnt(0)")
    for j in range(4):
        e(f"v_cmp_gt_u32 vcc, 32, v{28+j}")
        e("s_and_saveexec_b64 s[40:41], vcc")
        e(f"ds_write_b32 v{36+j}, v{32+j}")
        e(f"ds_write_b64 v{24+j}, v[{60+2*j}:{61+2*j}] offset:{LE}")
        e("s_andn2_b64 exec, s[40:41], exec")
        e(f"s_cbranch_execz K1_SL{j}")
        e("ds_add_rtn_u32 v16, v17, v18 offset:33792")
        e(f"v_mov_b32 v12, v{32+j}")
        e(f"v_mov_b32 v13, v{20+j}")
        e(f"v_mov_b32 v14, v{60+2*j}")
        e(f"v_mov_b32 v15, v{61+2*j}")
        e("s_waitcnt lgkmcnt(0)")
        e("v_lshlrev_b32 v16, 4, v16")
        e("buffer_store_dwordx4 v[12:15], v16, s[20:23], s39 offen")
        e("s_nop 1")
        lab(f"K1_SL{j}")
        e("s_mov_b64 exec, s[40:41]")
    e("s_branch K1_S2")
    lab("K1_GEMM")
    e("s_sub_u32 s3, s2, 125")
    e("v_lshrrev_b32 v4, 4, v2")
    e("v_and_b32 v5, 15, v2")
    e("v_lshlrev_b32 v6, 1, v4")
    e("v_xor_b32 v6, v6, v5")
    e("v_lshlrev_b32 v6, 4, v6")
    e("v_lshl_add_u32 v6, v4, 8, v6")
    e("v_lshlrev_b32 v7, 4, v4")
    e("v_lshl_add_u32 v7, v5, 8, v7")
    e("s_waitcnt lgkmcnt(0)")
    stamp(2)
    e("s_cmp_ge_u32 s3, 126")
    e("s_cselect_b32 s24, s14, s12")
    e("s_cselect_b32 s25, s15, s13")
    e("s_mov_b32 s26, 65536")
    e("s_mov_b32 s27, 0x00020000")
    e("s_cmp_ge_u32 s3, 125")
    e("s_cselect_b32 s33, 1, 0")
    e("s_and_b32 s33, s33, s3")
    e("s_lshl_b32 s33, s33, 15")
    for k in range(4):
        if k == 3:
            e("s_cmp_ge_u32 s32, 2")
            e("s_cbranch_scc1 K1_G1")
        e(f"s_add_u32 s34, s32, {10 * k}")
        e("s_lshl_b32 s35, s34, 6")
        e("s_and_b32 s35, s35, 128")
        e(f"v_xor_b32 v{8+k}, s35, v6")
        e("s_lshl_b32 s34, s34, 10")
        e("s_mov_b32 m0, s34")
        e("s_add_u32 s34, s34, s33")
        e(f"buffer_load_dwordx4 v{8+k}, s[24:27], s34 offen lds")
    lab("K1_G1")
    srd(20, 16, 17, WS_SIZE)
    e("v_lshrrev_b32 v12, 2, v5")
    e("v_and_b32 v13, 3, v2")
    e("v_lshl_add_u32 v14, v4, 3, v12")
    e("v_lshlrev_b32 v14, 8, v14")
    e("v_lshl_add_u32 v14, v13, 3, v14")
    e("v_lshl_add_u32 v14, v12, 5, v14")
    e("v_and_b32 v15, 1, v4")
    e("v_lshl_add_u32 v14, v15, 7, v14")
    e("s_cmp_ge_u32 s3, 125")
    e("s_cbranch_scc1 K1_TR")
    srd(28, 4, 5, N * 256)
    e("s_cmp_ge_u32 s32, 5")
    e("s_cselect_b32 s36, 1, 0")
    e("s_mul_i32 s37, s36, 5")
    e("s_sub_u32 s37, s32, s37")
    e("s_mul_i32 s38, s3, 80")
    e("s_lshl_b32 s37, s37, 4")
    e("s_add_u32 s38, s38, s37")
    e("s_lshl_b32 s38, s38, 8")
    e("s_barrier")
    for s in range(4):
        e(f"buffer_load_dwordx4 v[{16+4*s}:{19+4*s}], v7, s[28:31], s38 offen offset:{64*s}")
    e("s_lshl_b32 s39, s36, 7")
    for ft in range(4):
        e(f"s_add_u32 s40, s39, {ft << 5}")
        e(f"v_xor_b32 v{32+ft}, s40, v14")
    stamp(3)
    e("s_waitcnt vmcnt(4)")
    stamp(4)
    e("s_barrier")
    stamp(5)
    for s in range(4):
        for ft in range(4):
            for v in range(2):
                b = 64 + (ft * 4 + s) * 4 + 2 * v
                e(f"ds_read_b64_tr_b16 v[{b}:{b+1}], v{32+ft} offset:{8192*s + 1024*v}")
    e("v_and_b32 v36, 7, v5")
    e("v_lshlrev_b32 v36, 8, v36")
    e("v_lshrrev_b32 v37, 3, v5")
    e("v_lshl_add_u32 v36, v37, 6, v36")
    e("v_and_b32 v37, 1, v4")
    e("v_lshl_add_u32 v36, v37, 5, v36")
    e("v_lshrrev_b32 v37, 1, v4")
    e("v_lshl_add_u32 v36, v37, 4, v36")
    e("s_add_u32 s38, s38, s39")
    e(f"s_mov_b32 s42, {hex(NLOG2E)}")
    e(f"s_mov_b32 s43, {hex(NLOG2E)}")
    e("s_waitcnt vmcnt(0)")
    for s in range(4):
        e(f"s_waitcnt lgkmcnt({min(15, 24 - 8 * s)})")
        for ft in range(4):
            b = 64 + (ft * 4 + s) * 4
            c = "0" if s == 0 else f"v[{40+4*ft}:{43+4*ft}]"
            e(f"v_mfma_f32_16x16x32_bf16 v[{40+4*ft}:{43+4*ft}], v[{b}:{b+3}], v[{16+4*s}:{19+4*s}], {c}")
    e("s_nop 7")
    stamp(6)
    for ft in range(4):
        a = 40 + 4 * ft
        e(f"v_pk_mul_f32 v[{a}:{a+1}], v[{a}:{a+1}], s[42:43]")
        e(f"v_pk_mul_f32 v[{a+2}:{a+3}], v[{a+2}:{a+3}], s[42:43]")
        e(f"v_cvt_pk_bf16_f32 v{56+2*ft}, v{a}, v{a+1}")
        e(f"v_cvt_pk_bf16_f32 v{57+2*ft}, v{a+2}, v{a+3}")
    e("s_nop 1")
    for b in (56, 57, 60, 61):
        e(f"v_permlane16_swap_b32 v{b}, v{b+2}")
    e("s_nop 1")
    for i in range(4): e(f"v_mov_b32 v{16+i}, v{60+i}")
    for i in range(4): e(f"v_mov_b32_dpp v{60+i}, v{56+i} row_ror:8 row_mask:0xf bank_mask:0x3")
    for i in range(4): e(f"v_mov_b32_dpp v{56+i}, v{16+i} row_ror:8 row_mask:0xf bank_mask:0xc")
    e("buffer_store_dwordx4 v[60:63], v36, s[20:23], s38 offen offset:2048")
    e("buffer_store_dwordx4 v[56:59], v36, s[20:23], s38 offen")
    stamp(7)
    if PROF: e("s_waitcnt vmcnt(0)")
    stamp(8); stamp_rt(9)
    stamp_dump(20, 32, 0, words=[(0,0,1),(1,9,0),(9,9,0),(10,0,0)])
    e("s_endpgm")
    lab("K1_TR")
    e("s_lshl_b32 s40, s32, 5")
    e("v_xor_b32 v32, s40, v14")
    e("s_waitcnt vmcnt(0)")
    e("s_barrier")
    e("s_cmp_ge_u32 s32, 8")
    e("s_cbranch_scc1 K1_W3")
    for s in range(4):
        for v in range(2):
            b = 64 + s * 4 + 2 * v
            e(f"ds_read_b64_tr_b16 v[{b}:{b+1}], v32 offset:{8192*s + 1024*v}")
    e("s_sub_u32 s38, s3, 125")
    e("s_lshl_b32 s38, s38, 15")
    e("s_lshl_b32 s39, s32, 12")
    e("s_add_u32 s38, s38, s39")
    e(f"s_add_u32 s38, s38, {OFF_WF}")
    e("v_lshlrev_b32 v36, 4, v2")
    e("s_waitcnt lgkmcnt(0)")
    for s in range(4):
        b = 64 + s * 4
        e(f"buffer_store_dwordx4 v[{b}:{b+3}], v36, s[20:23], s38 offen offset:{1024*s}")
    if PROF: e("s_waitcnt vmcnt(0)")
    stamp(8); stamp_rt(9)
    stamp_dump(20, 32, 0, words=[(1,9,0)])
    e("s_endpgm")
    lab("K1_W3")
    e("s_cmp_lg_u32 s32, 8")
    e("s_cbranch_scc1 K1_END")
    e("s_cmp_lg_u32 s3, 125")
    e("s_cbranch_scc1 K1_END")
    srd(28, 12, 13, 260 * 256)
    e("v_lshlrev_b32 v16, 1, v2")
    e("s_mov_b32 s38, 65536")
    for p in range(2):
        for c in range(4):
            e(f"buffer_load_ushort v{40+4*p+c}, v16, s[28:31], s38 offen offset:{256*c + 128*p}")
    e(f"s_mov_b32 s42, {hex(NLOG2E)}")
    e(f"s_mov_b32 s38, {OFF_W3}")
    e("v_lshlrev_b32 v36, 4, v2")
    e("s_waitcnt vmcnt(0)")
    for r in range(40, 48):
        e(f"v_lshlrev_b32 v{r}, 16, v{r}")
        e(f"v_mul_f32 v{r}, s42, v{r}")
    for i in range(4):
        e(f"v_cvt_pk_bf16_f32 v{48+i}, v{40+2*i}, v{41+2*i}")
    e("buffer_store_dwordx4 v[48:51], v36, s[20:23], s38 offen")
    if PROF: e("s_waitcnt vmcnt(0)")
    stamp(8); stamp_rt(9)
    stamp_dump(20, 32, 0, words=[(1,9,0)])
    lab("K1_END")
    e("s_endpgm")

LIST_N = 2048 + 96
QN_N = 512 + 96
L_IDX = 0
L_EL = L_IDX + LIST_N * 4
L_QN = L_EL + LIST_N * 8
L_CNT = L_QN + QN_N * 4
L_Q = L_CNT + 256
L_X = L_Q + 48 * 320
L_AGG = L_X + 48 * 256
L_STAGE = L_AGG + 40960
L_END = L_STAGE + 65536
assert L_X % 256 == 0 and L_STAGE % 256 == 0 and L_END <= K2_LDS, (L_X, L_STAGE, L_END)

vLane = 1
ZT = [2, 18]
PB = 34
QB = [50, 54]
AE = 58
ASEL = 62
OH = 70
IDX = 72
TE = [80, 84]; TD = 88; TN = 90
ACC = [92, 94]
vPT = [96, 97]
vLi, vLe, vLv, vLq, vQc, vq, vVal, vQn, vNode, vL8, vFa = 98, 99, 100, 101, 102, 103, 104, 105, 106, 107, 108
vF = 110
vG4, vR4, vE4, vL16 = 112, 113, 114, 115
vOv = 116
tA, tB, tC, tD2, tE, tF = 118, 119, 120, 121, 122, 123
T4 = 124
K2_VGPR = 128
REC = 2; RANK = 6; NODE = 10; POS = 14; EA = 18; EB = 26
W2F = 34
XF = 2

SP, SE, SW, SX, SO = 8, 12, 16, 20, 24
sWave, sN0, sNc, sStage = 32, 33, 34, 35
sMask = 36; sQi = 38; sRem = 39; sC = 40; sEx = 42; s320 = 44
sOv0 = 48; sOv1 = 50; sPhase = 52; sOvG = 53; sOvC = 54; sOvS = 55; sQt = 56; sS0 = 57; sNs = 58; sFirst = 59; sLast = 28; sEs = 29; sAny = 30
EXP = os.environ.get("EXP", "")

def pk(op, d, a, b, c=None, clamp=False):
    s = f"v_pk_{op}_f32 v[{d}:{d+1}], {a}, {b}"
    if c is not None: s += f", {c}"
    if clamp: s += " clamp"
    return s
def p2(r): return f"v[{r}:{r+1}]"

def exps(p, k):
    z = ZT[p] + 4 * k
    return [f"v_exp_f32 v{TE[k%2]+i}, v{z+i}" for i in range(4)]

def unit(p, k, slot, tail=()):
    z = ZT[p] + 4 * k
    te = TE[k % 2]
    cs = f"s[{sC}:{sC+1}]"
    nv = 'novalu' in EXP
    if not nv:
        e(pk("fma", te, p2(te), cs, cs, True))
        e(pk("fma", te + 2, p2(te + 2), cs, cs, True))
        e(pk("mul", TD, p2(te), p2(te + 2)))
        e(pk("mul", TN, p2(z), p2(te + 2)))
    for x in slot: e(x)
    if not nv:
        e(f"v_rcp_f32 v{TD}, v{TD}")
        e(f"v_rcp_f32 v{TD+1}, v{TD+1}")
        nx = exps(p, k + 1) if k < 3 else exps(1 - p, 0)
        for x in nx: e(x)
    for x in tail: e(x)
    if not nv:
        e(pk("fma", TN, p2(z + 2), p2(te), p2(TN)))
        e(pk("fma", ACC[p], p2(TN), p2(TD), p2(ACC[p])))
    site = 4 * p + k
    e(f"s_bitcmp1_b64 s[{sMask}:{sMask+1}], {k}")
    e(f"s_cbranch_scc1 K2_FL{site}")
    lab(f"K2_RT{site}")

def T_reads():
    r = []
    for p in range(2):
        r.append(f"ds_read_b64_tr_b16 v[{QB[p]+2}:{QB[p]+3}], v{vq} offset:{128*p}")
        for u in range(2):
            for v in range(2):
                b = PB + (p * 2 + u) * 4 + 2 * v
                r.append(f"ds_read_b64_tr_b16 v[{b}:{b+1}], v{vPT[p]} offset:{(2*u+v)*1024}")
    return r

def M_ops(p):
    d = vr(ZT[p], 16)
    return [f"v_mfma_f32_32x32x16_bf16 {d}, {vr(AE,4)}, {vr(QB[p],4)}, 0",
            f"v_mfma_f32_32x32x16_bf16 {d}, {vr(ASEL,4)}, {vr(PB+p*8,4)}, {d}",
            f"v_mfma_f32_32x32x16_bf16 {d}, {vr(ASEL+4,4)}, {vr(PB+p*8+4,4)}, {d}"]

def G_guard():
    return [f"s_cmp_gt_i32 s{sRem}, {100000 if 'nogather' in EXP else 0}",
            f"s_cselect_b32 s{SP+2}, {N}, 0",
            f"s_sub_u32 s{sRem}, s{sRem}, 1"]

def G_op(q):
    if 'nodma' in EXP: return ["s_nop 0"]
    return [f"s_add_u32 m0, s{sStage}, {q*1024}",
            "s_nop 0",
            f"buffer_load_dwordx4 v[{IDX+2*q}:{IDX+2*q+1}], s[{SP}:{SP+3}], 0 idxen offen lds"]

def A_reads(step):
    return [f"s_mov_b64 exec, s[{sEx}:{sEx+1}]",
            f"ds_read_b64 v[{AE}:{AE+1}], v{vLe} offset:{step*128}",
            "s_mov_b64 exec, -1",
            f"ds_read_b32 v{vVal}, v{vLv} offset:{step*64}"]

def mask_ops():
    return [f"v_ashrrev_i32 v{vVal}, 31, v{vVal}",
            f"v_bfi_b32 v{AE+2}, v{vVal}, 0, v{OH}",
            f"v_bfi_b32 v{AE+3}, v{vVal}, 0, v{OH+1}"]

def vq_op():
    return [f"v_mad_u32_u24 v{vq}, v{vQn}, s{s320}, v{vQc}"]

def idx_reads(step):
    return [f"ds_read_b32 v{IDX+2*q}, v{vLi} offset:{step*64 + 16*q}" for q in range(4)]

def qn_read(step):
    return [f"ds_read_b32 v{vQn}, v{vLq} offset:{step*16}"]

def lists_init():
    e(f"v_lshlrev_b32 v{tA}, 4, v0")
    for i in range(4): e(f"v_mov_b32 v{T4+i}, -1")
    e("v_cmp_gt_u32 vcc, 536, v0")
    e("s_and_saveexec_b64 s[46:47], vcc")
    e(f"ds_write_b128 v{tA}, v[{T4}:{T4+3}] offset:{L_IDX}")
    e("s_mov_b64 exec, s[46:47]")
    for i in range(4): e(f"v_mov_b32 v{T4+i}, 0")
    e(f"ds_write_b128 v{tA}, v[{T4}:{T4+3}] offset:{L_EL}")
    e("v_cmp_gt_u32 vcc, 216, v0")
    e("s_and_saveexec_b64 s[46:47], vcc")
    e(f"ds_write_b128 v{tA}, v[{T4}:{T4+3}] offset:{L_EL + 16384}")
    e("s_mov_b64 exec, s[46:47]")

def load_slots(tag):
    e(f"v_and_b32 v{tA}, 511, v0")
    e(f"v_lshrrev_b32 v{EB}, 2, v{tA}")
    e(f"v_lshlrev_b32 v{EB}, 7, v{EB}")
    e(f"v_and_b32 v{tB}, 3, v0")
    e(f"v_lshl_add_u32 v{tC}, v{tB}, 4, v{EB}")
    e(f"v_lshl_add_u32 v{EB}, v{tB}, 5, v{EB}")
    e("s_mul_i32 s45, s2, 16000")
    e(f"s_lshr_b32 s46, s{sWave}, 3")
    e("s_lshl_b32 s46, s46, 6")
    e("s_add_u32 s46, s45, s46")
    e(f"s_add_u32 s46, s46, {OFF_SLOT}")
    e(f"s_add_u32 s{sEs}, s45, {OFF_ES}")
    for i in range(4): e(f"v_mov_b32 v{REC+i}, -1")
    e(f"v_cmp_gt_u32 vcc, 500, v{tA}")
    e("s_mov_b64 exec, vcc")
    e(f"buffer_load_dwordx4 v[{REC}:{REC+3}], v{tC}, s[{SW}:{SW+3}], s46 offen")
    e(f"s_cmp_ge_u32 s{sWave}, 8")
    e(f"s_cbranch_scc1 K2_LS{tag}")
    e(f"buffer_load_dwordx4 v[{EA}:{EA+3}], v{EB}, s[{SW}:{SW+3}], s{sEs} offen")
    e(f"buffer_load_dwordx4 v[{EA+4}:{EA+7}], v{EB}, s[{SW}:{SW+3}], s{sEs} offen offset:16")
    lab(f"K2_LS{tag}")
    e("s_mov_b64 exec, -1")
    e(f"s_add_u32 s{sEs}, s{sEs}, {OFF_ES2 - OFF_ES}")

def load_e2(tag):
    e(f"s_cmp_lt_u32 s{sWave}, 8")
    e(f"s_cbranch_scc1 K2_E2{tag}")
    e(f"v_cmp_ne_u32 vcc, -1, v{REC}")
    e("s_nop 0")
    e("s_mov_b64 exec, vcc")
    e(f"s_cbranch_execz K2_E2X{tag}")
    e(f"buffer_load_dwordx4 v[{EA}:{EA+3}], v{EB}, s[{SW}:{SW+3}], s{sEs} offen")
    e(f"buffer_load_dwordx4 v[{EA+4}:{EA+7}], v{EB}, s[{SW}:{SW+3}], s{sEs} offen offset:16")
    lab(f"K2_E2X{tag}")
    e("s_mov_b64 exec, -1")
    lab(f"K2_E2{tag}")

def x_frag_addr(dst):
    e(f"v_lshrrev_b32 v{dst}, 2, v{vG4}")
    e(f"v_xor_b32 v{dst}, v{dst}, v{vL16}")
    e(f"v_lshlrev_b32 v{dst}, 4, v{dst}")
    e(f"v_lshl_add_u32 v{dst}, v{vL16}, 8, v{dst}")
    e(f"v_add_u32 v{dst}, {L_X}, v{dst}")
    for s in range(1, 4):
        e(f"v_xor_b32 v{dst+s}, {64*s}, v{dst}")

def gen_k2():
    begin(K2)
    e(f"s_cmp_ge_u32 s2, {T}")
    e("s_cbranch_scc1 K2_END")
    stamp_rt(0); stamp(1)
    e("s_load_dwordx4 s[60:63], s[0:1], 0")
    e("s_load_dwordx2 s[66:67], s[0:1], 48")
    e("s_load_dwordx2 s[68:69], s[0:1], 64")
    e(f"v_and_b32 v{vLane}, 63, v0")
    e(f"v_lshrrev_b32 v{tA}, 6, v0")
    e("s_mul_i32 s33, s2, 625")
    e(f"v_readfirstlane_b32 s{sWave}, v{tA}")
    e("s_add_u32 s34, s33, 625")
    e(f"s_lshr_b32 s{sN0}, s33, 4")
    e("s_lshr_b32 s34, s34, 4")
    e(f"s_sub_u32 s{sNc}, s34, s{sN0}")
    e(f"s_lshl_b32 s{sStage}, s{sWave}, 12")
    e(f"s_add_u32 s{sStage}, s{sStage}, {L_STAGE}")
    e(f"v_lshrrev_b32 v{vG4}, 4, v{vLane}")
    e(f"v_and_b32 v{vL16}, 15, v{vLane}")
    e("s_waitcnt lgkmcnt(0)")
    stamp(2)
    srd(SW, 68, 69, WS_SIZE)
    load_slots("a")
    e(f"v_lshlrev_b32 v{tC}, 4, v{vLane}")
    e(f"s_mov_b32 s45, {OFF_W3}")
    e(f"buffer_load_dwordx2 v[{QB[0]}:{QB[0]+1}], v{tC}, s[{SW}:{SW+3}], s45 offen")
    e(f"buffer_load_dwordx2 v[{QB[1]}:{QB[1]+1}], v{tC}, s[{SW}:{SW+3}], s45 offen offset:8")
    e(f"v_lshlrev_b32 v{tB}, 2, v{vLane}")
    e(f"s_mov_b32 s45, {OFF_OVC}")
    e(f"v_mov_b32 v{vOv+1}, 0")
    e(f"buffer_load_dword v{vOv}, v{tB}, s[{SW}:{SW+3}], s45 offen")
    e(f"v_cmp_gt_u32 vcc, 61, v{vLane}")
    e("s_and_saveexec_b64 s[46:47], vcc")
    e(f"buffer_load_dword v{vOv+1}, v{tB}, s[{SW}:{SW+3}], s45 offen offset:256")
    e("s_mov_b64 exec, s[46:47]")
    e(f"s_cmp_lt_u32 s{sWave}, 8")
    e("s_cbranch_scc1 K2_P1")
    srd(SX, 60, 61, N * 256)
    e(f"v_xor_b32 v{tA}, v{vG4}, v{vL16}")
    e(f"v_lshlrev_b32 v{tA}, 4, v{tA}")
    e(f"v_lshl_add_u32 v{tA}, v{vG4}, 8, v{tA}")
    e(f"s_and_b32 s45, s{sWave}, 3")
    e("s_lshl_b32 s45, s45, 6")
    e(f"v_xor_b32 v{tA}, s45, v{tA}")
    e(f"s_sub_u32 s46, s{sWave}, 8")
    e("s_lshl_b32 s46, s46, 10")
    e(f"s_add_u32 m0, s46, {L_X}")
    e(f"s_lshl_b32 s47, s{sN0}, 8")
    e("s_add_u32 s47, s47, s46")
    e(f"buffer_load_dwordx4 v{tA}, s[{SX}:{SX+3}], s47 offen lds")
    e(f"s_cmp_ge_u32 s{sWave}, 12")
    e("s_cbranch_scc1 K2_P0")
    e(f"s_add_u32 m0, s46, {L_X + 8192}")
    e("s_add_u32 s47, s47, 8192")
    e(f"buffer_load_dwordx4 v{tA}, s[{SX}:{SX+3}], s47 offen lds")
    lab("K2_P0")
    e("s_lshl_b32 s46, s46, 2")
    e(f"s_add_u32 s45, s46, {OFF_WF}")
    for s in range(4):
        e(f"buffer_load_dwordx4 v[{W2F+4*s}:{W2F+3+4*s}], v{tC}, s[{SW}:{SW+3}], s45 offen offset:{1024*s}")
    lab("K2_P1")
    srd(SP, 68, 69, N, stride=256)
    srd(SO, 66, 67, N * 256)
    lists_init()
    e(f"v_add_u32 v{tA}, {L_AGG}, v{tA}")
    e(f"ds_write_b128 v{tA}, v[{T4}:{T4+3}]")
    e(f"ds_write_b128 v{tA}, v[{T4}:{T4+3}] offset:16384")
    e(f"s_cmp_ge_u32 s{sWave}, 8")
    e("s_cbranch_scc1 K2_P2")
    e(f"ds_write_b128 v{tA}, v[{T4}:{T4+3}] offset:32768")
    lab("K2_P2")
    e(f"s_mov_b32 s{sC}, {hex(CSC)}")
    e(f"s_mov_b32 s{sC+1}, {hex(CSC)}")
    e(f"s_mov_b32 s{sEx}, 0x0f0f0f0f")
    e(f"s_mov_b32 s{sEx+1}, 0xf0f0f0f0")
    e(f"s_mov_b32 s{s320}, 320")
    e(f"s_mov_b32 s{sPhase}, 0")
    e(f"s_mov_b32 s{sFirst}, 1")
    e(f"v_lshrrev_b32 v{vR4}, 2, v{vL16}")
    e(f"v_and_b32 v{tD2}, 3, v{vLane}")
    e(f"v_lshlrev_b32 v{tA}, 2, v{vG4}")
    e(f"v_xor_b32 v{tA}, v{tA}, v{vL16}")
    e(f"v_lshlrev_b32 v{IDX+1}, 4, v{tA}")
    for q in range(1, 4): e(f"v_mov_b32 v{IDX+2*q+1}, v{IDX+1}")
    e(f"v_lshlrev_b32 v{tA}, 1, v{vG4}")
    e(f"v_lshlrev_b32 v{tB}, 2, v{vR4}")
    e(f"v_xor_b32 v{tA}, v{tA}, v{tB}")
    e(f"v_lshlrev_b32 v{tA}, 4, v{tA}")
    e(f"v_lshl_add_u32 v{tA}, v{vR4}, 8, v{tA}")
    e(f"v_lshl_add_u32 v{tA}, v{tD2}, 3, v{tA}")
    e(f"v_add_u32 v{vPT[0]}, s{sStage}, v{tA}")
    e(f"v_xor_b32 v{vPT[1]}, 128, v{vPT[0]}")
    e(f"v_lshlrev_b32 v{tA}, 5, v{vG4}")
    e(f"v_lshl_add_u32 v{tA}, v{tD2}, 3, v{tA}")
    e(f"v_add_u32 v{vQc}, {L_Q}, v{tA}")
    e(f"v_lshlrev_b32 v{vL8}, 3, v{vLane}")
    e(f"v_bfe_u32 v{tA}, v{vLane}, 3, 2")
    e(f"v_lshl_add_u32 v{vE4}, v{tA}, 2, v{tD2}")
    e(f"v_mov_b32 v{tB}, 0x3f80")
    e(f"v_and_b32 v{tC}, 1, v{vE4}")
    e(f"v_lshlrev_b32 v{tC}, 4, v{tC}")
    e(f"v_lshlrev_b32 v{tC}, v{tC}, v{tB}")
    e(f"v_lshrrev_b32 v{tE}, 1, v{vE4}")
    e(f"v_and_b32 v{tF}, 1, v{tA}")
    e(f"v_lshlrev_b32 v{tF}, 4, v{tF}")
    e(f"v_lshlrev_b32 v{tF}, v{tF}, v{tB}")
    e(f"v_lshrrev_b32 v{tA}, 1, v{tA}")
    e(f"s_not_b64 exec, s[{sEx}:{sEx+1}]")
    e(f"v_mov_b32 v{tE}, 99")
    e(f"v_mov_b32 v{tA}, 99")
    e("s_mov_b64 exec, -1")
    e(f"v_mov_b32 v{tB}, 0")
    for i in range(8):
        e(f"v_cmp_eq_u32 s[{64+2*(i%2)}:{65+2*(i%2)}], {i}, v{tE}") if False else None
    for i in range(8):
        e(f"v_cmp_eq_u32 vcc, {i}, v{tE}")
        e(f"v_mov_b32 v{AE + i%4}, 0" if i < 4 else f"v_mov_b32 v{ACC[0] + i%4}, 0")
        e("s_nop 0")
        e(f"v_cndmask_b32 v{ASEL+i}, v{tB}, v{tC}, vcc")
    for i in range(2):
        e(f"v_cmp_eq_u32 vcc, {i}, v{tA}")
        e("s_nop 1")
        e(f"v_cndmask_b32 v{OH+i}, v{tB}, v{tF}, vcc")
    e(f"v_lshlrev_b32 v{vE4}, 2, v{vE4}")
    e(f"v_lshlrev_b32 v{vR4}, 2, v{vR4}")
    e(f"v_lshlrev_b32 v{vG4}, 2, v{vG4}")
    stamp(3)
    e(f"s_cmp_lt_u32 s{sWave}, 8")
    e("s_cbranch_scc1 K2_P3")
    e("s_waitcnt vmcnt(5) lgkmcnt(0)")
    e("s_branch K2_P4")
    lab("K2_P3")
    e("s_waitcnt vmcnt(0) lgkmcnt(0)")
    lab("K2_P4")
    stamp(4); stamp_rt2(4)
    e(f"v_cmp_ne_u32 s[{sOv0}:{sOv0+1}], 0, v{vOv}")
    e(f"v_cmp_ne_u32 s[{sOv1}:{sOv1+1}], 0, v{vOv+1}")
    e("s_nop 0")
    e(f"s_or_b64 s[46:47], s[{sOv0}:{sOv0+1}], s[{sOv1}:{sOv1+1}]")
    e(f"s_cselect_b32 s{sLast}, 0, 1")
    load_e2("a")
    lab("K2_ROUND")
    e(f"v_cmp_ne_u32 s[{sAny}:{sAny+1}], -1, v{REC}")
    e(f"v_mov_b32 v{tA}, 1")
    e("s_barrier")
    e(f"s_cmp_eq_u64 s[{sAny}:{sAny+1}], 0")
    e("s_cbranch_scc1 K2_C1")
    for j in range(4):
        e(f"v_cmp_ne_u32 vcc, -1, v{REC+j}")
        e(f"v_bfe_u32 v{NODE+j}, v{REC+j}, 14, 6")
        e(f"v_lshlrev_b32 v{tB}, 2, v{NODE+j}")
        e("s_mov_b64 exec, vcc")
        e(f"ds_add_rtn_u32 v{RANK+j}, v{tB}, v{tA} offset:{L_CNT}")
        e("s_mov_b64 exec, -1")
    lab("K2_C1")
    e(f"v_lshlrev_b32 v{tB}, 2, v{vLane}")
    e(f"s_cmp_lt_u32 s{sWave}, 8")
    e("s_cbranch_scc1 K2_C1B")
    e("s_waitcnt vmcnt(0)")
    lab("K2_C1B")
    e("s_waitcnt lgkmcnt(0)")
    e("s_barrier")
    stamp(5)
    e(f"ds_read_b32 v{tD2}, v{tB} offset:{L_CNT}")
    e("s_waitcnt lgkmcnt(0)")
    e(f"v_add_u32 v{tD2}, 3, v{tD2}")
    e(f"v_lshrrev_b32 v{tD2}, 2, v{tD2}")
    e(f"v_mov_b32 v{tE}, v{tD2}")
    e("s_nop 1")
    for sh in (1, 2, 4, 8):
        e(f"v_add_u32_dpp v{tE}, v{tE}, v{tE} row_shr:{sh} row_mask:0xf bank_mask:0xf bound_ctrl:0")
        e("s_nop 1")
    e(f"v_add_u32_dpp v{tE}, v{tE}, v{tE} row_bcast:15 row_mask:0xa bank_mask:0xf")
    e("s_nop 1")
    e(f"v_add_u32_dpp v{tE}, v{tE}, v{tE} row_bcast:31 row_mask:0xc bank_mask:0xf")
    e("s_nop 1")
    e(f"v_readlane_b32 s{sQt}, v{tE}, 63")
    e(f"v_sub_u32 v{tE}, v{tE}, v{tD2}")
    e(f"v_lshlrev_b32 v{tE}, 2, v{tE}")
    e("s_nop 1")
    e(f"s_cmp_gt_u32 s{sQt}, 512")
    e("s_cbranch_scc1 K2_SPLIT")
    e(f"s_cmp_eq_u64 s[{sAny}:{sAny+1}], 0")
    e("s_cbranch_scc1 K2_C2")
    for j in range(4):
        e(f"v_lshlrev_b32 v{tB}, 2, v{NODE+j}")
        e(f"ds_bpermute_b32 v{POS+j}, v{tB}, v{tE}")
    for j in range(4):
        e(f"v_cmp_ne_u32 vcc, -1, v{REC+j}")
        e(f"v_and_b32 v{tA}, 0x3fff, v{REC+j}")
        e(f"v_and_b32 v{tC}, 3, v{RANK+j}")
        e(f"v_cmp_eq_u32 s[46:47], 0, v{tC}")
        e(f"s_waitcnt lgkmcnt({3 - j + 3 * j})")
        e(f"v_add_u32 v{tB}, v{POS+j}, v{RANK+j}")
        e(f"v_lshlrev_b32 v{POS+j}, 2, v{tB}")
        e(f"v_lshlrev_b32 v{tC}, 3, v{tB}")
        e("s_mov_b64 exec, vcc")
        e(f"ds_write_b32 v{POS+j}, v{tA} offset:{L_IDX}")
        e(f"ds_write_b64 v{tC}, v[{EA+2*j}:{EA+2*j+1}] offset:{L_EL}")
        e("s_and_b64 exec, vcc, s[46:47]")
        e(f"ds_write_b32 v{tB}, v{NODE+j} offset:{L_QN}")
        e("s_mov_b64 exec, -1")
    lab("K2_C2")
    e(f"s_cmp_lt_u32 s{sWave}, 8")
    e("s_cbranch_scc1 K2_NOQ")
    e(f"s_cmp_eq_u32 s{sFirst}, 0")
    e("s_cbranch_scc1 K2_NOQ")
    x_frag_addr(T4)
    XQ = [80, 84, 88]
    QA = [92, 28, 30]
    QA = [26 + 2, 104, 108]
    for s in range(4):
        for nt in range(3):
            e(f"ds_read_b128 v[{XQ[nt]}:{XQ[nt]+3}], v{T4+s} offset:{4096*nt}")
        for nt in range(3):
            e(f"s_waitcnt lgkmcnt({2-nt})")
            d = vr(QA[nt], 4)
            c = "0" if s == 0 else d
            e(f"v_mfma_f32_16x16x32_bf16 {d}, v[{W2F+4*s}:{W2F+3+4*s}], v[{XQ[nt]}:{XQ[nt]+3}], {c}")
    e(f"s_mov_b32 s46, {hex(NLOG2E)}")
    e(f"s_mov_b32 s47, {hex(NLOG2E)}")
    e(f"v_mul_u32_u24 v{tA}, 320, v{vL16}")
    e(f"v_lshl_add_u32 v{tA}, v{vG4}, 1, v{tA}")
    e(f"s_lshl_b32 s45, s{sWave}, 5")
    e(f"s_add_u32 s45, s45, {L_Q - 256}")
    e(f"v_add_u32 v{tA}, s45, v{tA}")
    e("s_nop 1")
    for nt in range(3):
        a = QA[nt]
        e(f"v_pk_mul_f32 v[{a}:{a+1}], v[{a}:{a+1}], s[46:47]")
        e(f"v_pk_mul_f32 v[{a+2}:{a+3}], v[{a+2}:{a+3}], s[46:47]")
        e(f"v_cvt_pk_bf16_f32 v{a}, v{a}, v{a+1}")
        e(f"v_cvt_pk_bf16_f32 v{a+1}, v{a+2}, v{a+3}")
        e(f"ds_write_b64 v{tA}, v[{a}:{a+1}] offset:{5120*nt}")
    e(f"v_lshlrev_b32 v{vL8}, 3, v{vLane}")
    lab("K2_NOQ")
    e(f"s_mov_b32 s{sFirst}, 0")
    e(f"s_add_u32 s45, s{sQt}, 3")
    e("s_lshr_b32 s45, s45, 2")
    e("s_lshr_b32 s46, s45, 4")
    e("s_and_b32 s45, s45, 15")
    e(f"s_mul_i32 s{sS0}, s46, s{sWave}")
    e(f"s_min_u32 s47, s45, s{sWave}")
    e(f"s_add_u32 s{sS0}, s{sS0}, s47")
    e(f"s_cmp_lt_u32 s{sWave}, s45")
    e(f"s_addc_u32 s{sNs}, s46, 0")
    e(f"s_mov_b32 s{sRem}, s{sNs}")
    e(f"s_lshl_b32 s45, s{sS0}, 6")
    e(f"v_add_u32 v{vLi}, s45, v{vG4}")
    e(f"v_add_u32 v{vLv}, s45, v{vE4}")
    e(f"v_lshlrev_b32 v{vLe}, 1, v{vLv}")
    e(f"v_add_u32 v{vLe}, {L_EL}, v{vLe}")
    e(f"s_lshl_b32 s45, s{sS0}, 4")
    e(f"s_add_u32 s45, s45, {L_QN}")
    e(f"v_add_u32 v{vLq}, s45, v{vR4}")
    e(f"v_lshl_add_u32 v{tB}, v{vLane}, 2, s45")
    e("s_waitcnt lgkmcnt(0)")
    e("s_barrier")
    stamp(6); stamp_rt2(6)
    for x in idx_reads(0): e(x)
    for x in qn_read(0): e(x)
    e(f"ds_read2_b32 v[{tC}:{tC+1}], v{tB} offset0:0 offset1:1")
    for x in G_guard(): e(x)
    e("s_waitcnt lgkmcnt(2)")
    for q in range(4):
        for x in G_op(q): e(x)
    e("s_waitcnt lgkmcnt(0)")
    for x in vq_op(): e(x)
    e(f"s_lshl_b32 s45, s{sNs}, 2")
    e(f"v_cmp_ne_u32 s[{sMask}:{sMask+1}], v{tC}, v{tC+1}")
    e(f"v_cmp_gt_u32 vcc, s45, v{vLane}")
    e(f"v_lshlrev_b32 v{vNode}, 10, v{tC}")
    e(f"v_add_u32 v{vNode}, {L_AGG}, v{vNode}")
    e(f"s_and_b64 s[{sMask}:{sMask+1}], s[{sMask}:{sMask+1}], vcc")
    e("s_sub_u32 s45, s45, 1")
    e(f"s_bitset1_b64 s[{sMask}:{sMask+1}], s45")
    e(f"s_mov_b32 s{sQi}, 0")
    stamp(7)
    e(f"s_cmp_eq_u32 s{sNs}, 0")
    e("s_cbranch_scc1 K2_REND")
    for x in A_reads(0): e(x)
    for x in idx_reads(1): e(x)
    for x in qn_read(1): e(x)
    e("s_waitcnt vmcnt(0)")
    stamp(8)
    for x in T_reads(): e(x)
    e("s_waitcnt lgkmcnt(10)")
    for x in mask_ops(): e(x)
    for x in G_guard(): e(x)
    e("s_waitcnt lgkmcnt(0)")
    for x in M_ops(0): e(x)
    for q in range(4):
        for x in G_op(q): e(x)
    e("s_nop 3")
    for x in exps(0, 0): e(x)
    stamp(9); stamp_rt2(9)
    e(".p2align 6")
    lab("K2_LOOP")
    if 'noprio' not in EXP:
        e("s_setprio 0")
        e(f"s_cmp_lt_u32 s{sNs}, 2")
        e("s_cbranch_scc1 K2_PR")
        e("s_setprio 1")
        e(f"s_cmp_lt_u32 s{sNs}, 3")
        e("s_cbranch_scc1 K2_PR")
        e("s_setprio 2")
        e(f"s_cmp_lt_u32 s{sNs}, 4")
        e("s_cbranch_scc1 K2_PR")
        e("s_setprio 3")
        lab("K2_PR")
    mh = M_ops(1); ml = M_ops(0)
    unit(0, 0, [mh[0]], ["s_waitcnt lgkmcnt(0)"] + vq_op() + A_reads(1) + idx_reads(2))
    unit(0, 1, [mh[1]], ["s_waitcnt lgkmcnt(0)"] + mask_ops())
    unit(0, 2, [mh[2]], ["s_waitcnt vmcnt(0)"] + T_reads())
    unit(0, 3, G_guard(), [f"v_add_u32 v{vLi}, 64, v{vLi}", f"v_add_u32 v{vLv}, 64, v{vLv}"])
    unit(1, 0, ["s_waitcnt lgkmcnt(0)", ml[0]], G_op(0) + G_op(1))
    unit(1, 1, [ml[1]], G_op(2) + G_op(3))
    unit(1, 2, [ml[2]], qn_read(2) + [f"v_add_u32 v{vLe}, 128, v{vLe}"])
    unit(1, 3, [f"s_sub_u32 s{sNs}, s{sNs}, 1"], [f"v_add_u32 v{vLq}, 16, v{vLq}"])
    e(f"s_lshr_b64 s[{sMask}:{sMask+1}], s[{sMask}:{sMask+1}], 4")
    e(f"s_add_u32 s{sQi}, s{sQi}, 4")
    e(f"s_cmp_lg_u32 s{sNs}, 0")
    e("s_cbranch_scc1 K2_LOOP")
    lab("K2_REND")
    stamp(10); stamp_rt2(10)
    e(f"s_cmp_eq_u32 s{sLast}, 0")
    e("s_cbranch_scc1 K2_MORE")
    lab("K2_FIN")
    UA = 80
    WU = 2
    XE = 34
    e(f"s_cmp_ge_u32 s{sWave}, 8")
    e("s_cbranch_scc1 K2_F1")
    e(f"v_lshlrev_b32 v{tC}, 4, v{vLane}")
    e(f"s_lshl_b32 s45, s{sWave}, 12")
    e(f"s_add_u32 s45, s45, {OFF_WF + 32768}")
    e("s_nop 7")
    for s in range(4):
        e(f"buffer_load_dwordx4 v[{WU+4*s}:{WU+3+4*s}], v{tC}, s[{SW}:{SW+3}], s45 offen offset:{1024*s}")
    e("s_add_u32 s45, s45, 32768")
    for s in range(4):
        e(f"buffer_load_dwordx4 v[{WU+16+4*s}:{WU+19+4*s}], v{tC}, s[{SW}:{SW+3}], s45 offen offset:{1024*s}")
    x_frag_addr(T4)
    XR = [34, 38, 42, 46, 50, 54, 58, 62, 66, 70, 74, 92]
    e("s_waitcnt lgkmcnt(0)")
    for s in range(4):
        for nt in range(3):
            b = XR[s * 3 + nt]
            e(f"ds_read_b128 v[{b}:{b+3}], v{T4+s} offset:{4096*nt}")
    for s in range(4):
        e(f"s_waitcnt vmcnt({7-s}) lgkmcnt({9-3*s})")
        for nt in range(3):
            b = XR[s * 3 + nt]
            d = vr(UA + 4 * nt, 4)
            c = "0" if s == 0 else d
            e(f"v_mfma_f32_16x16x32_bf16 {d}, v[{WU+4*s}:{WU+3+4*s}], v[{b}:{b+3}], {c}")
    lab("K2_F1")
    e(f"v_lshlrev_b32 v{tA}, 4, v0")
    e(f"v_add_u32 v{tA}, {L_AGG}, v{tA}")
    e(f"s_mul_i32 s45, s{sWave}, 272")
    e(f"s_add_u32 s45, s45, {L_Q}")
    e(f"v_lshl_add_u32 v{tB}, v{vLane}, 2, s45")
    e(f"s_mov_b32 s46, {hex(FSC)}")
    e(f"s_mov_b32 s47, {hex(FSC)}")
    e("s_waitcnt lgkmcnt(0)")
    e("s_barrier")
    stamp(11)
    CV = [96, 100, 104]
    e(f"ds_read_b128 v[{CV[0]}:{CV[0]+3}], v{tA}")
    e(f"ds_read_b128 v[{CV[1]}:{CV[1]+3}], v{tA} offset:16384")
    def conv(k):
        b = CV[k]
        e(f"v_cvt_f32_f64 v{b}, v[{b}:{b+1}]")
        e(f"v_cvt_f32_f64 v{b+1}, v[{b+2}:{b+3}]")
        e(f"v_pk_mul_f32 v[{b}:{b+1}], v[{b}:{b+1}], s[46:47]")
        e(f"v_cvt_pk_bf16_f32 v{b}, v{b}, v{b+1}")
        e(f"ds_write_b32 v{tB}, v{b} offset:{16*272*k}")
    e(f"s_cmp_ge_u32 s{sWave}, 8")
    e("s_cbranch_scc1 K2_F2")
    e(f"ds_read_b128 v[{CV[2]}:{CV[2]+3}], v{tA} offset:32768")
    e("s_waitcnt lgkmcnt(0)")
    conv(2)
    lab("K2_F2")
    e("s_waitcnt lgkmcnt(0)")
    conv(0); conv(1)
    e(f"v_mul_u32_u24 v{tC}, 272, v{vL16}")
    e(f"v_lshl_add_u32 v{tC}, v{vG4}, 2, v{tC}")
    e("s_waitcnt lgkmcnt(0)")
    e("s_barrier")
    e(f"s_cmp_ge_u32 s{sWave}, 8")
    e("s_cbranch_scc1 K2_XW")
    for s in range(4):
        for nt in range(3):
            b = XR[s * 3 + nt]
            e(f"ds_read_b128 v[{b}:{b+3}], v{tC} offset:{L_Q + 16*272*nt + 64*s}")
    e(f"v_lshlrev_b32 v{tA}, 8, v{vL16}")
    e(f"v_lshl_add_u32 v{tA}, v{vG4}, 1, v{tA}")
    e(f"s_lshl_b32 s45, s{sN0}, 8")
    e(f"s_lshl_b32 s46, s{sWave}, 5")
    e("s_add_u32 s45, s45, s46")
    e(f"s_mov_b32 s46, {hex(NLOG2E)}")
    e("s_waitcnt vmcnt(0)")
    for s in range(4):
        e(f"s_waitcnt lgkmcnt({9 - 3*s})")
        for nt in range(3):
            b = XR[s * 3 + nt]
            d = vr(UA + 4 * nt, 4)
            e(f"v_mfma_f32_16x16x32_bf16 {d}, v[{WU+16+4*s}:{WU+19+4*s}], v[{b}:{b+3}], {d}")
    e(f"s_sub_u32 s47, s{sNc}, 32")
    e(f"v_cmp_gt_u32 vcc, s47, v{vL16}")
    e("s_nop 6")
    O = 2
    for i in range(12): e(f"v_mul_f32 v{O+i}, s46, v{UA+i}")
    for i in range(12): e(f"v_exp_f32 v{O+i}, v{O+i}")
    for i in range(12): e(f"v_add_f32 v{O+i}, 1.0, v{O+i}")
    for i in range(12): e(f"v_rcp_f32 v{O+i}, v{O+i}")
    for i in range(12): e(f"v_mul_f32 v{O+i}, v{O+i}, v{UA+i}")
    for nt in range(3):
        a = O + 4 * nt
        e(f"v_cvt_pk_bf16_f32 v{a}, v{a}, v{a+1}")
        e(f"v_cvt_pk_bf16_f32 v{a+1}, v{a+2}, v{a+3}")
        if nt == 2:
            e("s_mov_b64 exec, vcc")
        e(f"buffer_store_dwordx2 v[{a}:{a+1}], v{tA}, s[{SO}:{SO+3}], s45 offen")
        if nt < 2:
            e("s_add_u32 s45, s45, 4096")
    lab("K2_XW")
    if PROF: e("s_waitcnt vmcnt(0)")
    stamp(12); stamp_rt(13)
    stamp_dump(SW, sWave, 0x100000, words=[(2,0,1),(3,13,0),(4,9,1),(5,9,0),(6,10,0),(7,10,1),(11,0,0),(12,4,0),(13,6,0),(14,13,1)])
    lab("K2_END")
    e("s_endpgm")
    for site in range(8):
        p, k = site // 4, site % 4
        lab(f"K2_FL{site}")
        e(f"s_add_u32 s45, s{sQi}, {k}")
        e(f"v_add_f32 v{vF}, v{ACC[p]}, v{ACC[p]+1}")
        e(f"v_readlane_b32 s45, v{vNode}, s45")
        e(f"v_cvt_f64_f32 v[{vF}:{vF+1}], v{vF}")
        e(f"v_mov_b32 v{ACC[p]}, 0")
        e(f"v_add_u32 v{vFa}, s45, v{vL8}")
        e(f"v_mov_b32 v{ACC[p]+1}, 0")
        e(f"ds_add_f64 v{vFa}, v[{vF}:{vF+1}] offset:{512*p}")
        e(f"s_branch K2_RT{site}")
    lab("K2_SPLIT")
    e(f"s_mov_b32 s{sLast}, 0")
    e("s_waitcnt vmcnt(0)")
    e("s_barrier")
    e("s_branch K2_PAIR")
    lab("K2_MORE")
    e("s_waitcnt vmcnt(0) lgkmcnt(0)")
    e("s_barrier")
    e(f"s_cmp_eq_u32 s{sPhase}, 0")
    e("s_cbranch_scc1 K2_OVSTART")
    e(f"s_cmp_ge_u32 s{sPhase}, 4")
    e("s_cbranch_scc1 K2_OVNEXT")
    lab("K2_PAIR")
    e(f"s_add_u32 s{sPhase}, s{sPhase}, 1")
    load_slots("b")
    lists_init()
    e("s_waitcnt vmcnt(0)")
    load_e2("b")
    e("s_waitcnt vmcnt(0)")
    for k in range(4):
        e(f"s_cmp_eq_u32 s{sPhase}, {k+1}")
        e(f"s_cbranch_scc0 K2_PK{k}")
        e(f"v_mov_b32 v{REC}, v{REC+k}")
        e(f"v_mov_b32 v{EA}, v{EA+2*k}")
        e(f"v_mov_b32 v{EA+1}, v{EA+2*k+1}")
        lab(f"K2_PK{k}")
    for j in range(1, 4): e(f"v_mov_b32 v{REC+j}, -1")
    e("s_waitcnt lgkmcnt(0)")
    e("s_branch K2_ROUND")
    lab("K2_OVSTART")
    e(f"s_mov_b32 s{sPhase}, 4")
    lab("K2_OVNEXT")
    e(f"s_cmp_eq_u32 s{sPhase}, 4")
    e("s_cbranch_scc1 K2_OVPICK")
    e(f"s_add_u32 s{sOvS}, s{sOvS}, 1024")
    e(f"s_cmp_lt_u32 s{sOvS}, s{sOvC}")
    e("s_cbranch_scc1 K2_OVLOAD")
    lab("K2_OVPICK")
    e(f"s_mov_b32 s{sPhase}, 5")
    e(f"s_mov_b32 s{sOvS}, 0")
    e(f"s_cmp_lg_u64 s[{sOv0}:{sOv0+1}], 0")
    e("s_cbranch_scc0 K2_OVP1")
    e(f"s_ff1_i32_b64 s{sOvG}, s[{sOv0}:{sOv0+1}]")
    e(f"s_bitset0_b64 s[{sOv0}:{sOv0+1}], s{sOvG}")
    e(f"v_readlane_b32 s{sOvC}, v{vOv}, s{sOvG}")
    e("s_branch K2_OVLOAD")
    lab("K2_OVP1")
    e(f"s_cmp_lg_u64 s[{sOv1}:{sOv1+1}], 0")
    e("s_cbranch_scc0 K2_FIN")
    e(f"s_ff1_i32_b64 s{sOvG}, s[{sOv1}:{sOv1+1}]")
    e(f"s_bitset0_b64 s[{sOv1}:{sOv1+1}], s{sOvG}")
    e(f"v_readlane_b32 s{sOvC}, v{vOv+1}, s{sOvG}")
    e(f"s_add_u32 s{sOvG}, s{sOvG}, 64")
    lab("K2_OVLOAD")
    e(f"s_mul_i32 s45, s{sOvG}, {CH*16}")
    e(f"s_lshl_b32 s46, s{sOvS}, 4")
    e("s_add_u32 s45, s45, s46")
    e(f"s_add_u32 s45, s45, {OFF_OVF}")
    e(f"v_lshlrev_b32 v{tB}, 4, v0")
    e(f"buffer_load_dwordx4 v[{REC}:{REC+3}], v{tB}, s[{SW}:{SW+3}], s45 offen")
    lists_init()
    e(f"v_add_u32 v{tB}, s{sOvS}, v0")
    e("s_waitcnt vmcnt(0)")
    e(f"v_cmp_gt_u32 vcc, s{sOvC}, v{tB}")
    e(f"v_cmp_eq_u32 s[46:47], s2, v{REC+1}")
    e("s_and_b64 vcc, vcc, s[46:47]")
    e(f"v_mov_b32 v{tC}, -1")
    e(f"v_cndmask_b32 v{REC}, v{tC}, v{REC}, vcc")
    e(f"v_mov_b32 v{EA}, v{REC+2}")
    e(f"v_mov_b32 v{EA+1}, v{REC+3}")
    for j in range(1, 4): e(f"v_mov_b32 v{REC+j}, -1")
    e("s_waitcnt lgkmcnt(0)")
    e("s_branch K2_ROUND")

gen_k1()
K1ST = os.environ.get("K1ST", "sc1")
if K1ST == "plain": K1ST = ""
if K1ST:
    for i, l in enumerate(out):
        if "buffer_store" in l and "s70" not in l and "v56" not in l:
            out[i] = ("    s_nop 0" if K1ST == "none" else l + " " + K1ST)
gen_k2()
K3TXT = ""
if PROF == 2:
    HEADER = HEADER.replace(".amdgcn_target", "; @launch kernel=mpnn_red_kernel grid=(1,1,1) block=(256,1,1) lds=1024\n.amdgcn_target")
    begin("mpnn_red_kernel")
    e("s_cmp_ge_u32 s2, 1")
    e("s_cbranch_scc1 K3_END")
    e("s_load_dwordx4 s[4:7], s[0:1], 56")
    e("v_lshlrev_b32 v1, 10, v0")
    e("v_lshlrev_b32 v2, 2, v0")
    e("v_mov_b32 v3, 0")
    e("ds_write_b32 v2, v3")
    e("s_waitcnt lgkmcnt(0)")
    e("s_barrier")
    srd(8, 6, 7, WS_SIZE)
    srd(12, 4, 5, 256)
    def red(base, nw, words):
        e(f"s_mov_b32 s16, {base}")
        for w in range(nw):
            for (wd, i, neg) in words:
                e(f"buffer_load_dword v4, v1, s[8:11], s16 offen offset:{64*w + 4*i}")
                e("s_waitcnt vmcnt(0)")
                if neg: e("v_not_b32 v4, v4")
                e(f"ds_max_u32 v3, v4 offset:{4*wd}")
                e("s_waitcnt lgkmcnt(0)")
    red(OFF_DBG + 0x100000, 16, [(2,0,1),(4,9,1),(5,9,0),(6,10,0),(7,10,1),(11,0,0),(12,4,0),(13,6,0)])
    red(OFF_DBG + 0x100000, 8, [(3,13,0),(14,13,1)])
    e("v_cmp_gt_u32 vcc, 125, v0")
    e("s_and_saveexec_b64 s[20:21], vcc")
    red(OFF_DBG, 10, [(0,0,1),(8,9,0),(10,0,0)])
    e("s_mov_b32 s17, 128000")
    e("v_add_u32 v1, s17, v1")
    red(OFF_DBG, 10, [(0,0,1),(9,9,0),(10,0,0)])
    e("s_mov_b64 exec, s[20:21]")
    e("s_barrier")
    e("ds_read_b32 v4, v2")
    e("s_waitcnt lgkmcnt(0)")
    e("buffer_store_dword v4, v2, s[12:15], 0 offen")
    lab("K3_END")
    e("s_endpgm")
    K3TXT = kd("mpnn_red_kernel", 16, 32)
text = HEADER + "\n".join(out) + "\n" + kd(K1, 128, 100 if PROF else 48) + kd(K2, K2_VGPR, 100 if PROF else 72) + K3TXT
path = sys.argv[1] if len(sys.argv) > 1 else "standalone__mpnn_edge_mlp__graph.s"
open(path, "w").write(text)
print("wrote", path, len(out), "lines; K2 LDS end", L_END)
```

```python
import sys

N = 10000
E = 320000
G = 125
CH = 2560
T = 256
P_OFF = 3328
OFF_REC = 0x280000
OFF_E = 0x400000
OFF_TAB = 0x680000
OFF_WF = 0x6C0000
OFF_W3 = 0x6D8000
WS_SIZE = 0x2000000
NLOG2E = 0xBFB8AA3B
CSC = 0x2F800000
FSC = 0xAF317218
MAGIC625 = 6871948

import os
PROF = int(os.environ.get("PROF", "0"))
OFF_DBG = 0x1800000
out = []
def stamp(i):
    if PROF == 1:
        e(f"s_memtime s[{72+2*i}:{73+2*i}]")
        e("s_waitcnt lgkmcnt(0)")
def stamp_rt(i):
    if PROF:
        e(f"s_memrealtime s[{72+2*i}:{73+2*i}]")
        e("s_waitcnt lgkmcnt(0)")
def stamp_rt2(i):
    if PROF == 2:
        e(f"s_memrealtime s[{72+2*i}:{73+2*i}]")
        e("s_waitcnt lgkmcnt(0)")
def stamp_dump(srdw, wave, koff, nst=14, words=()):
    if PROF:
        e("s_mov_b64 exec, -1")
        e("v_mov_b32 v20, 0")
        for i in range(nst):
            e(f"v_writelane_b32 v20, s{72+2*i}, {i}")
        e(f"s_lshl_b32 s70, s2, 4")
        e(f"s_add_u32 s70, s70, s{wave}")
        e("s_lshl_b32 s70, s70, 6")
        e(f"s_add_u32 s70, s70, {OFF_DBG + koff}")
        e("v_mbcnt_lo_u32_b32 v21, -1, 0")
        e("v_mbcnt_hi_u32_b32 v21, -1, v21")
        e("v_lshlrev_b32 v21, 2, v21")
        e("s_mov_b64 exec, 0xffff")
        e(f"buffer_store_dword v20, v21, s[{srdw}:{srdw+3}], s70 offen")
def e(s=""):
    out.append("    " + s if s and not s.endswith(":") else s)
def lab(s):
    out.append(s + ":")
def vr(b, n):
    return f"v[{b}:{b+n-1}]" if n > 1 else f"v{b}"
def sr(b, n):
    return f"s[{b}:{b+n-1}]" if n > 1 else f"s{b}"
def srd(d, lo, hi, size, stride=0):
    e(f"s_mov_b32 s{d}, s{lo}")
    if stride:
        e(f"s_or_b32 s{d+1}, s{hi}, {hex(stride << 16)}")
    else:
        e(f"s_mov_b32 s{d+1}, s{hi}")
    e(f"s_mov_b32 s{d+2}, {size}")
    e(f"s_mov_b32 s{d+3}, 0x00020000")

K1 = "mpnn_prep_kernel"
K2 = "mpnn_main_kernel"
K1_LDS = 102400
K2_LDS = 163328

HEADER = f"""; Kernarg layout for this problem (72 bytes, ptrs only, base s[0:1]):
; @launch kernel={K1} grid=(253,1,1) block=(640,1,1) lds={K1_LDS}
; @launch kernel={K2} grid=(256,1,1) block=(1024,1,1) lds={K2_LDS}
.amdgcn_target "amdgcn-amd-amdhsa--gfx950"
"""

def kd(name, vgpr, sgpr):
    acc = (vgpr + 3) // 4 * 4
    return f""".section .rodata,"a"
.p2align 6
.amdhsa_kernel {name}
  .amdhsa_next_free_vgpr {vgpr}
  .amdhsa_next_free_sgpr {sgpr}
  .amdhsa_accum_offset {acc}
  .amdhsa_group_segment_fixed_size 0
  .amdhsa_kernarg_size 72
  .amdhsa_user_sgpr_count 2
  .amdhsa_user_sgpr_kernarg_segment_ptr 1
  .amdhsa_system_sgpr_workgroup_id_x 1
.end_amdhsa_kernel
"""

def begin(name):
    out.append(".text")
    out.append(f".globl {name}")
    out.append(".p2align 8")
    out.append(f".type {name},@function")
    lab(name)

def gen_k1():
    begin(K1)
    e("s_cmp_ge_u32 s2, 253")
    e("s_cbranch_scc1 K1_END")
    stamp_rt(0); stamp(1)
    e("s_load_dwordx4 s[4:7], s[0:1], 0")
    e("s_load_dwordx4 s[8:11], s[0:1], 16")
    e("s_load_dwordx4 s[12:15], s[0:1], 32")
    e("s_load_dwordx2 s[16:17], s[0:1], 64")
    e("v_and_b32 v2, 63, v0")
    e("v_lshrrev_b32 v3, 6, v0")
    e("v_lshlrev_b32 v1, 4, v0")
    e("v_readfirstlane_b32 s32, v3")
    e("s_cmp_ge_u32 s2, 125")
    e("s_cbranch_scc1 K1_GEMM")
    LB = 2560; RI = 4096; EI = 14336
    e("s_mul_i32 s3, s2, 10240")
    e("v_lshlrev_b32 v57, 5, v0")
    e("v_lshlrev_b32 v17, 2, v0")
    e("v_mov_b32 v12, 0")
    e("ds_write_b32 v17, v12")
    e("s_waitcnt lgkmcnt(0)")
    stamp(2)
    srd(24, 10, 11, E * 4)
    srd(28, 8, 9, E * 4)
    e("buffer_load_dwordx4 v[4:7], v1, s[24:27], s3 offen")
    e("buffer_load_dwordx4 v[8:11], v1, s[28:31], s3 offen")
    srd(44, 6, 7, E * 8)
    e("s_lshl_b32 s35, s3, 1")
    e("s_barrier")
    e("buffer_load_dwordx4 v[60:63], v57, s[44:47], s35 offen")
    e("buffer_load_dwordx4 v[64:67], v57, s[44:47], s35 offen offset:16")
    srd(20, 16, 17, WS_SIZE)
    e(f"s_mov_b32 s33, {MAGIC625}")
    e("v_mov_b32 v18, 1")
    e("v_lshlrev_b32 v19, 4, v2")
    e(f"s_add_u32 s34, s3, {OFF_REC}")
    e(f"s_add_u32 s35, s35, {OFF_E}")
    e(f"s_add_u32 s37, s35, 10240")
    e("s_lshl_b32 s36, s2, 10")
    e(f"s_add_u32 s36, s36, {OFF_TAB}")
    stamp(3)
    e("s_waitcnt vmcnt(3)")
    stamp(4)
    for j in range(4):
        e(f"v_lshl_add_u32 v16, v{4+j}, 4, 15")
        e(f"v_mul_hi_u32_u24 v{20+j}, s33, v16")
        e(f"v_lshlrev_b32 v{36+j}, 2, v{20+j}")
        e(f"ds_add_rtn_u32 v{28+j}, v{36+j}, v18")
    for j in range(4):
        e(f"v_mul_u32_u24 v16, 625, v{20+j}")
        e("v_lshrrev_b32 v16, 4, v16")
        e(f"v_sub_u32 v{32+j}, v{4+j}, v16")
    e("s_waitcnt lgkmcnt(0)")
    e("s_barrier")
    e("ds_read_b128 v[40:43], v19")
    e("s_waitcnt vmcnt(2)")
    for j in range(4):
        e(f"v_add_u32 v{8+j}, 1, v{8+j}")
        e(f"v_lshl_or_b32 v{32+j}, v{32+j}, 16, v{8+j}")
    e("s_waitcnt lgkmcnt(0)")
    e("v_add_u32 v46, v40, v41")
    e("v_add_u32 v47, v46, v42")
    e("v_add_u32 v48, v47, v43")
    e("v_mov_b32 v44, v48")
    e("s_nop 1")
    for sh in (1, 2, 4, 8):
        e(f"v_add_u32_dpp v44, v44, v44 row_shr:{sh} row_mask:0xf bank_mask:0xf bound_ctrl:0")
        e("s_nop 1")
    e("v_add_u32_dpp v44, v44, v44 row_bcast:15 row_mask:0xa bank_mask:0xf")
    e("s_nop 1")
    e("v_add_u32_dpp v44, v44, v44 row_bcast:31 row_mask:0xc bank_mask:0xf")
    e("v_sub_u32 v44, v44, v48")
    e("v_add_u32 v45, v44, v40")
    e("v_add_u32 v46, v44, v46")
    e("v_add_u32 v47, v44, v47")
    e(f"ds_write_b128 v19, v[44:47] offset:{LB}")
    e("s_cmp_lg_u32 s32, 9")
    e("s_cbranch_scc1 K1_S1")
    for i in range(4): e(f"v_lshl_or_b32 v{48+i}, v{40+i}, 16, v{44+i}")
    e("buffer_store_dwordx4 v[48:51], v19, s[20:23], s36 offen")
    lab("K1_S1")
    e("s_waitcnt lgkmcnt(0)")
    for j in range(4):
        e(f"ds_read_b32 v{24+j}, v{36+j} offset:{LB}")
    for j in range(4):
        e(f"s_waitcnt lgkmcnt({3-j+j})" if j == 0 else f"s_waitcnt lgkmcnt(3)")
        e(f"v_add_u32 v{24+j}, v{24+j}, v{28+j}")
        e(f"v_lshlrev_b32 v16, 2, v{24+j}")
        e(f"v_lshlrev_b32 v{24+j}, 3, v{24+j}")
        e(f"ds_write_b32 v16, v{32+j} offset:{RI}")
    e("s_cmp_lg_u32 s32, 9")
    e("s_cbranch_scc1 K1_S2")
    e("s_waitcnt vmcnt(1)")
    e("s_branch K1_S3")
    lab("K1_S2")
    e("s_waitcnt vmcnt(0)")
    lab("K1_S3")
    for j in range(4):
        e(f"ds_write_b64 v{24+j}, v[{60+2*j}:{61+2*j}] offset:{EI}")
    e("s_waitcnt lgkmcnt(0)")
    stamp(5)
    e("s_barrier")
    stamp(6)
    e(f"ds_read_b128 v[68:71], v1 offset:{RI}")
    e(f"ds_read_b128 v[72:75], v1 offset:{EI}")
    e(f"ds_read_b128 v[76:79], v1 offset:{EI + 10240}")
    for k, so in enumerate((34, 35, 37)):
        e(f"s_waitcnt lgkmcnt({2-k})")
        e(f"buffer_store_dwordx4 v[{68+4*k}:{71+4*k}], v1, s[20:23], s{so} offen")
    stamp(7)
    if PROF: e("s_waitcnt vmcnt(0)")
    stamp(8); stamp_rt(9)
    stamp_dump(20, 32, 0)
    e("s_endpgm")
    lab("K1_GEMM")
    e("s_sub_u32 s3, s2, 125")
    e("v_lshrrev_b32 v4, 4, v2")
    e("v_and_b32 v5, 15, v2")
    e("v_lshlrev_b32 v6, 1, v4")
    e("v_xor_b32 v6, v6, v5")
    e("v_lshlrev_b32 v6, 4, v6")
    e("v_lshl_add_u32 v6, v4, 8, v6")
    e("s_waitcnt lgkmcnt(0)")
    stamp(2)
    e("s_cmp_ge_u32 s3, 126")
    e("s_cselect_b32 s24, s14, s12")
    e("s_cselect_b32 s25, s15, s13")
    e("s_mov_b32 s26, 65536")
    e("s_mov_b32 s27, 0x00020000")
    e("s_cmp_ge_u32 s3, 125")
    e("s_cselect_b32 s33, 1, 0")
    e("s_and_b32 s33, s33, s3")
    e("s_lshl_b32 s33, s33, 15")
    for k in range(4):
        if k == 3:
            e("s_cmp_ge_u32 s32, 2")
            e("s_cbranch_scc1 K1_G1")
        e(f"s_add_u32 s34, s32, {10 * k}")
        e("s_lshl_b32 s35, s34, 6")
        e("s_and_b32 s35, s35, 128")
        e(f"v_xor_b32 v{8+k}, s35, v6")
        e("s_lshl_b32 s34, s34, 10")
        e("s_mov_b32 m0, s34")
        e("s_add_u32 s34, s34, s33")
        e(f"buffer_load_dwordx4 v{8+k}, s[24:27], s34 offen lds")
    lab("K1_G1")
    srd(20, 16, 17, WS_SIZE)
    e("v_lshrrev_b32 v12, 2, v5")
    e("v_and_b32 v13, 3, v2")
    e("v_lshl_add_u32 v14, v4, 3, v12")
    e("v_lshlrev_b32 v14, 8, v14")
    e("v_lshl_add_u32 v14, v13, 3, v14")
    e("v_lshl_add_u32 v14, v12, 5, v14")
    e("v_and_b32 v15, 1, v4")
    e("v_lshl_add_u32 v14, v15, 7, v14")
    e("s_cmp_ge_u32 s3, 125")
    e("s_cbranch_scc1 K1_TR")
    LX = 32768
    srd(28, 4, 5, N * 256)
    e("v_xor_b32 v7, v4, v5")
    e("v_lshl_add_u32 v37, v5, 4, v7")
    e("v_lshlrev_b32 v7, 4, v7")
    e("v_lshl_add_u32 v7, v4, 8, v7")
    e("s_mul_i32 s38, s3, 20480")
    e("s_barrier")
    for k in range(2):
        e(f"s_add_u32 s34, s32, {10*k}")
        e("s_and_b32 s35, s34, 3")
        e("s_lshl_b32 s35, s35, 6")
        e(f"v_xor_b32 v{38+k}, s35, v7")
        e("s_lshl_b32 s34, s34, 10")
        e(f"s_add_u32 m0, s34, {LX}")
        e("s_add_u32 s34, s34, s38")
        e(f"buffer_load_dwordx4 v{38+k}, s[28:31], s34 offen lds")
    e("s_cmp_ge_u32 s32, 5")
    e("s_cselect_b32 s36, 1, 0")
    e("s_mul_i32 s37, s36, 5")
    e("s_sub_u32 s37, s32, s37")
    e("s_lshl_b32 s37, s37, 12")
    e("s_add_u32 s38, s38, s37")
    e(f"s_add_u32 s37, s37, {LX}")
    e("v_lshl_add_u32 v56, v37, 4, s37")
    for s in range(1, 4): e(f"v_xor_b32 v{56+s}, {64*s}, v56")
    e("s_lshl_b32 s39, s36, 7")
    for ft in range(4):
        e(f"s_add_u32 s40, s39, {ft << 5}")
        e(f"v_xor_b32 v{32+ft}, s40, v14")
    stamp(3)
    e("s_waitcnt vmcnt(2)")
    stamp(4)
    e("s_barrier")
    stamp(5)
    for s in range(4):
        for ft in range(4):
            for v in range(2):
                b = 64 + (ft * 4 + s) * 4 + 2 * v
                e(f"ds_read_b64_tr_b16 v[{b}:{b+1}], v{32+ft} offset:{8192*s + 1024*v}")
    e("v_and_b32 v36, 7, v5")
    e("v_lshlrev_b32 v36, 8, v36")
    e("v_lshrrev_b32 v37, 3, v5")
    e("v_lshl_add_u32 v36, v37, 6, v36")
    e("v_and_b32 v37, 1, v4")
    e("v_lshl_add_u32 v36, v37, 5, v36")
    e("v_lshrrev_b32 v37, 1, v4")
    e("v_lshl_add_u32 v36, v37, 4, v36")
    e("s_add_u32 s38, s38, s39")
    e(f"s_add_u32 s38, s38, {P_OFF}")
    e(f"s_mov_b32 s42, {hex(NLOG2E)}")
    e(f"s_mov_b32 s43, {hex(NLOG2E)}")
    e("s_waitcnt vmcnt(0)")
    e("s_barrier")
    for s in range(4): e(f"ds_read_b128 v[{16+4*s}:{19+4*s}], v{56+s}")
    for s in range(4):
        e(f"s_waitcnt lgkmcnt({3-s})")
        for ft in range(4):
            b = 64 + (ft * 4 + s) * 4
            c = "0" if s == 0 else f"v[{40+4*ft}:{43+4*ft}]"
            e(f"v_mfma_f32_16x16x32_bf16 v[{40+4*ft}:{43+4*ft}], v[{b}:{b+3}], v[{16+4*s}:{19+4*s}], {c}")
    e("s_nop 7")
    stamp(6)
    for ft in range(4):
        a = 40 + 4 * ft
        e(f"v_pk_mul_f32 v[{a}:{a+1}], v[{a}:{a+1}], s[42:43]")
        e(f"v_pk_mul_f32 v[{a+2}:{a+3}], v[{a+2}:{a+3}], s[42:43]")
        e(f"v_cvt_pk_bf16_f32 v{56+2*ft}, v{a}, v{a+1}")
        e(f"v_cvt_pk_bf16_f32 v{57+2*ft}, v{a+2}, v{a+3}")
    e("s_nop 1")
    for b in (56, 57, 60, 61):
        e(f"v_permlane16_swap_b32 v{b}, v{b+2}")
    e("s_nop 1")
    for i in range(4): e(f"v_mov_b32 v{16+i}, v{60+i}")
    for i in range(4): e(f"v_mov_b32_dpp v{60+i}, v{56+i} row_ror:8 row_mask:0xf bank_mask:0x3")
    for i in range(4): e(f"v_mov_b32_dpp v{56+i}, v{16+i} row_ror:8 row_mask:0xf bank_mask:0xc")
    e("buffer_store_dwordx4 v[60:63], v36, s[20:23], s38 offen offset:2048")
    e("buffer_store_dwordx4 v[56:59], v36, s[20:23], s38 offen")
    stamp(7)
    if PROF: e("s_waitcnt vmcnt(0)")
    stamp(8); stamp_rt(9)
    stamp_dump(20, 32, 0)
    e("s_endpgm")
    lab("K1_TR")
    e("s_lshl_b32 s40, s32, 5")
    e("v_xor_b32 v32, s40, v14")
    e("s_waitcnt vmcnt(0)")
    e("s_barrier")
    e("s_cmp_ge_u32 s32, 8")
    e("s_cbranch_scc1 K1_W3")
    for s in range(4):
        for v in range(2):
            b = 64 + s * 4 + 2 * v
            e(f"ds_read_b64_tr_b16 v[{b}:{b+1}], v32 offset:{8192*s + 1024*v}")
    e("s_sub_u32 s38, s3, 125")
    e("s_lshl_b32 s38, s38, 15")
    e("s_lshl_b32 s39, s32, 12")
    e("s_add_u32 s38, s38, s39")
    e(f"s_add_u32 s38, s38, {OFF_WF}")
    e("v_lshlrev_b32 v36, 4, v2")
    e("s_waitcnt lgkmcnt(0)")
    for s in range(4):
        b = 64 + s * 4
        e(f"buffer_store_dwordx4 v[{b}:{b+3}], v36, s[20:23], s38 offen offset:{1024*s}")
    if PROF: e("s_waitcnt vmcnt(0)")
    stamp(8); stamp_rt(9)
    stamp_dump(20, 32, 0)
    e("s_endpgm")
    lab("K1_W3")
    e("s_cmp_lg_u32 s32, 8")
    e("s_cbranch_scc1 K1_END")
    e("s_cmp_lg_u32 s3, 125")
    e("s_cbranch_scc1 K1_END")
    srd(28, 12, 13, 260 * 256)
    e("v_lshlrev_b32 v16, 1, v2")
    e("s_mov_b32 s38, 65536")
    for p in range(2):
        for c in range(4):
            e(f"buffer_load_ushort v{40+4*p+c}, v16, s[28:31], s38 offen offset:{256*c + 128*p}")
    e(f"s_mov_b32 s42, {hex(NLOG2E)}")
    e(f"s_mov_b32 s38, {OFF_W3}")
    e("v_lshlrev_b32 v36, 4, v2")
    e("s_waitcnt vmcnt(0)")
    for r in range(40, 48):
        e(f"v_lshlrev_b32 v{r}, 16, v{r}")
        e(f"v_mul_f32 v{r}, s42, v{r}")
    for i in range(4):
        e(f"v_cvt_pk_bf16_f32 v{48+i}, v{40+2*i}, v{41+2*i}")
    e("buffer_store_dwordx4 v[48:51], v36, s[20:23], s38 offen")
    e("v_mov_b64 v[52:53], 0")
    e("v_mov_b64 v[54:55], 0")
    e("s_mov_b64 exec, 0xffff")
    e("buffer_store_dwordx4 v[52:55], v36, s[20:23], 0 offen offset:3072")
    if PROF: e("s_waitcnt vmcnt(0)")
    stamp(8); stamp_rt(9)
    stamp_dump(20, 32, 0)
    lab("K1_END")
    e("s_endpgm")

CAPQ = 384
NPOS = 6
L_CNT = 0
L_FLG = 256
L_QN = 512
L_IDX = 2048
L_AL = 8192
L_AGG = 32768
L_Q = 73728
L_X = L_Q + 40 * 320
L_STAGE = L_X + 40 * 256
L_W3 = L_STAGE + 65536
L_END = L_W3 + 1024
assert L_X % 256 == 0 and L_STAGE % 256 == 0 and L_END <= K2_LDS, (L_X, L_STAGE, L_END)

vLane = 1
ZT = [2, 18]
PB = 34
QB = [50, 54]
AE = 58
ASEL = 62
vMin1, vTab = 70, 71
IDX = 72
TE = [80, 84]; TD = 88; TN = 90
ACC = [92, 94]
vPT = [96, 97]
vLi, vLa, vLq, vQc, vq, vQn = 98, 99, 100, 101, 102, 103
vFa = [104, 105]
vF = 106
vG4, vL16, vLa0, vR4 = 108, 109, 110, 111
tA, tB, tC, tD2, tE, tF = 112, 113, 114, 115, 116, 117
FL4 = 120
T4 = 124
K2_VGPR = 128
REC = 2; RANK = 6; NA = 10; POS = 14; EA = 18; SRC = 26; OHT = 30; vRem = 32; vRo = 33
vBase = 118; vI0 = 119
W2F = 34

SP, SR, SW, SX, SO = 8, 12, 16, 20, 24
sLast = 28; sEarly = 29; sAny = 30
sWave, sN0, sNc, sStage = 32, 33, 34, 35
sMask = 36; sPre = 37; sT0 = 38; sAL = 39; sC = 40; sEx = 42; s320 = 44
sTile = 48; sRnd = 49; sMore = 50; sPhase = 52; sGw = 53; sQt = 56; sS0 = 57; sNs = 58; sIsH = 59
sOH = 60; sSlow = 62
EXP = os.environ.get("EXP", "")
OUTST = os.environ.get("OUTST", "sc0 sc1")
if OUTST == "plain": OUTST = ""

def pk(op, d, a, b, c=None, clamp=False):
    s = f"v_pk_{op}_f32 v[{d}:{d+1}], {a}, {b}"
    if c is not None: s += f", {c}"
    if clamp: s += " clamp"
    return s
def p2(r): return f"v[{r}:{r+1}]"

def exps(p, k):
    z = ZT[p] + 4 * k
    return [f"v_exp_f32 v{TE[k%2]+i}, v{z+i}" for i in range(4)]

def unit(t, p, k, slot, tail=()):
    z = ZT[p] + 4 * k
    te = TE[k % 2]
    cs = f"s[{sC}:{sC+1}]"
    e(pk("fma", te, p2(te), cs, cs, True))
    e(pk("fma", te + 2, p2(te + 2), cs, cs, True))
    e(pk("mul", TD, p2(te), p2(te + 2)))
    e(pk("mul", TN, p2(z), p2(te + 2)))
    for x in slot: e(x)
    e(f"v_rcp_f32 v{TD}, v{TD}")
    e(f"v_rcp_f32 v{TD+1}, v{TD+1}")
    if k < 3: nx = exps(p, k + 1)
    elif p == 0 or t < NPOS - 1: nx = exps(1 - p, 0)
    else: nx = []
    for x in nx: e(x)
    for x in tail: e(x)
    e(pk("fma", TN, p2(z + 2), p2(te), p2(TN)))
    e(pk("fma", ACC[p], p2(TN), p2(TD), p2(ACC[p])))
    e(f"s_bitcmp1_b32 s{sMask}, {4*t+k}")
    e(f"s_cbranch_scc1 K2_FL{t}_{p}{k}")
    lab(f"K2_RT{t}_{p}{k}")

def T_reads():
    r = []
    for p in range(2):
        r.append(f"ds_read_b64_tr_b16 v[{QB[p]+2}:{QB[p]+3}], v{vq} offset:{128*p}")
        for u in range(2):
            for v in range(2):
                b = PB + (p * 2 + u) * 4 + 2 * v
                r.append(f"ds_read_b64_tr_b16 v[{b}:{b+1}], v{vPT[p]} offset:{(2*u+v)*1024}")
    return r

def M_ops(p):
    d = vr(ZT[p], 16)
    return [f"v_mfma_f32_32x32x16_bf16 {d}, {vr(AE,4)}, {vr(QB[p],4)}, 0",
            f"v_mfma_f32_32x32x16_bf16 {d}, {vr(ASEL,4)}, {vr(PB+p*8,4)}, {d}",
            f"v_mfma_f32_32x32x16_bf16 {d}, {vr(ASEL+4,4)}, {vr(PB+p*8+4,4)}, {d}"]

def G_op(q):
    if 'nodma' in EXP: return ["s_nop 0"]
    return [f"buffer_load_dwordx4 v[{IDX+2*q}:{IDX+2*q+1}], s[{SP}:{SP+3}], 0 idxen offen offset:{1024*q} lds"]

def A_read(step):
    return [f"s_mov_b64 exec, s[{sEx}:{sEx+1}]",
            f"ds_read_b128 v[{AE}:{AE+3}], v{vLa} offset:{step*256}",
            "s_mov_b64 exec, -1"]

def vq_op():
    return [f"v_mad_u32_u24 v{vq}, v{vQn}, s{s320}, v{vQc}"]

def idx_reads(step):
    return [f"ds_read_b32 v{IDX+2*q}, v{vLi} offset:{step*64 + 16*q}" for q in range(4)]

def qn_read(step):
    return [f"ds_read_b32 v{vQn}, v{vLq} offset:{step*16}"]

def wu_loads(WU):
    e(f"v_lshlrev_b32 v{tC}, 4, v{vLane}")
    e(f"s_add_u32 s45, s{sGw}, 32768")
    e("s_add_u32 s46, s45, 32768")
    for s in range(4):
        e(f"buffer_load_dwordx4 v[{WU+4*s}:{WU+3+4*s}], v{tC}, s[{SW}:{SW+3}], s45 offen offset:{1024*s}")
    for s in range(4):
        e(f"buffer_load_dwordx4 v[{WU+16+4*s}:{WU+19+4*s}], v{tC}, s[{SW}:{SW+3}], s46 offen offset:{1024*s}")

def load_recs(tag):
    e(f"v_lshrrev_b32 v{vRem}, 16, v{vTab}")
    e(f"v_and_b32 v{vRo}, 0xffff, v{vTab}")
    e(f"v_sub_u32 v{vRem}, v{vRem}, v{vI0}")
    e(f"v_add3_u32 v{vRo}, v{vRo}, v{vBase}, v{vI0}")
    e(f"v_cmp_lt_i32 s[{sAny}:{sAny+1}], 0, v{vRem}")
    e(f"v_lshlrev_b32 v{OHT}, 2, v{vRo}")
    e(f"v_lshlrev_b32 v{vRo}, 3, v{vRo}")
    e(f"s_mov_b32 s45, {OFF_REC}")
    e(f"s_mov_b64 exec, s[{sAny}:{sAny+1}]")
    e(f"s_cbranch_execz K2_LR{tag}")
    e(f"buffer_load_dwordx4 v[{REC}:{REC+3}], v{OHT}, s[{SW}:{SW+3}], s45 offen")
    lab(f"K2_LR{tag}")
    e("s_mov_b64 exec, -1")

def lists_init_all():
    e(f"v_lshlrev_b32 v{tA}, 4, v0")
    e(f"v_mov_b64 v[{FL4}:{FL4+1}], 0")
    e(f"v_mov_b64 v[{FL4+2}:{FL4+3}], 0")
    e(f"ds_write_b128 v{tA}, v[{FL4}:{FL4+3}]")
    e(f"ds_write_b128 v{tA}, v[{FL4}:{FL4+3}] offset:16384")

def consts_a():
    e(f"s_or_b32 s{SP+1}, s{SP+1}, {hex(256 << 16)}")
    e(f"s_mov_b32 s{SP+2}, {N + 32}")
    e(f"s_mov_b32 s{SP+3}, 0x00020000")
    e(f"s_lshl_b32 s{sStage}, s{sWave}, 12")
    e(f"s_add_u32 s{sStage}, s{sStage}, {L_STAGE}")
    e(f"s_mov_b32 m0, s{sStage}")
    e(f"v_xor_b32 v{IDX+7}, v{vG4}, v{vL16}")
    e(f"v_lshlrev_b32 v{IDX+7}, 4, v{IDX+7}")
    for q in range(3): e(f"v_add_u32 v{IDX+2*q+1}, {(3-q)*1024}, v{IDX+7}")

def consts_b():
    c, t = vq, vQn
    e(f"s_mov_b32 s{SO+2}, {N*256}")
    e(f"s_mov_b32 s{SO+3}, 0x00020000")
    e(f"s_mov_b32 s{sC}, {hex(CSC)}")
    e(f"s_mov_b32 s{sC+1}, {hex(CSC)}")
    e(f"s_mov_b32 s{sEx}, 0x0f0f0f0f")
    e(f"s_mov_b32 s{sEx+1}, 0xf0f0f0f0")
    e(f"s_mov_b32 s{s320}, 320")
    e(f"v_and_b32 v{c}, 3, v0")
    e(f"v_lshrrev_b32 v{t}, 1, v{vG4}")
    e(f"v_xor_b32 v{t}, v{t}, v{vR4}")
    e(f"v_lshlrev_b32 v{t}, 4, v{t}")
    e(f"v_lshl_add_u32 v{t}, v{vR4}, 6, v{t}")
    e(f"v_lshl_add_u32 v{t}, v{c}, 3, v{t}")
    e(f"v_add_u32 v{vPT[0]}, s{sStage}, v{t}")
    e(f"v_xor_b32 v{vPT[1]}, 128, v{vPT[0]}")
    e(f"v_add_u32 v{t}, v{vG4}, v{c}")
    e(f"v_mov_b32 v{vQc}, {L_Q}")
    e(f"v_lshl_add_u32 v{vQc}, v{t}, 3, v{vQc}")
    e(f"v_bfe_u32 v{t}, v{vLane}, 3, 2")
    e(f"v_lshlrev_b32 v{c}, 4, v{c}")
    e(f"v_lshl_add_u32 v{vLa0}, v{t}, 6, v{c}")
    e(f"v_lshlrev_b64 v[{vF}:{vF+1}], v{c}, s[{sOH}:{sOH+1}]")
    for m in range(4): e(f"v_mov_b64 v[{ASEL+2*m}:{ASEL+2*m+1}], 0")
    e(f"v_mov_b64 v[{AE}:{AE+1}], 0")
    e(f"v_mov_b64 v[{AE+2}:{AE+3}], 0")
    e(f"v_mov_b64 v[{ACC[0]}:{ACC[0]+1}], 0")
    e(f"v_mov_b64 v[{ACC[1]}:{ACC[1]+1}], 0")
    for m in range(4):
        e(f"s_mov_b32 exec_lo, {hex(0x0f << (8*m))}")
        e(f"s_mov_b32 exec_hi, {hex(0xf0 << (8*m))}")
        e(f"v_mov_b64 v[{ASEL+2*m}:{ASEL+2*m+1}], v[{vF}:{vF+1}]")
    e("s_mov_b64 exec, -1")

def count_part(tag, vm, st=False):
    e(f"v_lshrrev_b32 v{tC}, 16, v{vTab}")
    e(f"v_cmp_lt_u32 vcc, s{sRnd}, v{tC}")
    e(f"v_mov_b32 v{tA}, 4")
    e(f"v_lshlrev_b32 v{tB}, 2, v{vLane}")
    e(f"s_cbranch_vccnz K2_MARK{tag}")
    lab(f"K2_MARKX{tag}")
    e(f"s_cmp_eq_u64 s[{sAny}:{sAny+1}], 0")
    e(f"s_cbranch_scc1 K2_C1{tag}")
    e(f"s_mov_b32 s46, {OFF_E}")
    e(f"s_waitcnt vmcnt({vm})")
    if st: stamp(4); stamp_rt2(4)
    for j in range(4): e(f"v_bfe_u32 v{NA+j}, v{REC+j}, 14, 8")
    for j in range(4):
        e(f"v_cmpx_lt_i32 vcc, {j}, v{vRem}")
        e(f"ds_add_rtn_u32 v{RANK+j}, v{NA+j}, v{tA} offset:{L_CNT}")
    e(f"s_mov_b64 exec, s[{sAny}:{sAny+1}]")
    e(f"buffer_load_dwordx4 v[{EA}:{EA+3}], v{vRo}, s[{SW}:{SW+3}], s46 offen")
    e(f"buffer_load_dwordx4 v[{EA+4}:{EA+7}], v{vRo}, s[{SW}:{SW+3}], s46 offen offset:16")
    e("s_mov_b64 exec, -1")
    for j in range(4): e(f"v_and_b32 v{SRC+j}, 0x3fff, v{REC+j}")
    lab(f"K2_C1{tag}")

def scan_part(tag, split):
    e(f"ds_read_b32 v{tD2}, v{tB} offset:{L_CNT}")
    e("s_waitcnt lgkmcnt(0)")
    e(f"v_add_u32 v{tD2}, 12, v{tD2}")
    e(f"v_lshrrev_b32 v{tD2}, 4, v{tD2}")
    e(f"v_max_u32 v{tD2}, v{tD2}, v{vMin1}")
    e(f"v_mov_b32 v{tE}, v{tD2}")
    e("s_nop 1")
    for sh in (1, 2, 4, 8):
        e(f"v_add_u32_dpp v{tE}, v{tE}, v{tE} row_shr:{sh} row_mask:0xf bank_mask:0xf bound_ctrl:0")
        e("s_nop 1")
    e(f"v_add_u32_dpp v{tE}, v{tE}, v{tE} row_bcast:15 row_mask:0xa bank_mask:0xf")
    e("s_nop 1")
    e(f"v_add_u32_dpp v{tE}, v{tE}, v{tE} row_bcast:31 row_mask:0xc bank_mask:0xf")
    e("s_nop 0")
    e(f"v_sub_u32 v{tF}, v{tE}, v{tD2}")
    e(f"v_readlane_b32 s{sQt}, v{tE}, 63")
    e(f"v_lshlrev_b32 v{tE}, 4, v{tF}")
    e(f"s_cmp_eq_u64 s[{sAny}:{sAny+1}], 0")
    e(f"s_cbranch_scc1 K2_C2{tag}")
    for j in range(4):
        e(f"ds_bpermute_b32 v{POS+j}, v{NA+j}, v{tE}")
    lab(f"K2_C2{tag}")
    e(f"s_cmp_gt_u32 s{sQt}, {CAPQ}")
    e(f"s_cbranch_scc1 {split}")
    e(f"s_add_u32 s45, s{sQt}, 3")
    e("s_lshr_b32 s45, s45, 2")
    e("s_lshr_b32 s46, s45, 4")
    e("s_and_b32 s45, s45, 15")
    e(f"s_mul_i32 s{sS0}, s46, s{sWave}")
    e(f"s_min_u32 s47, s45, s{sWave}")
    e(f"s_add_u32 s{sS0}, s{sS0}, s47")
    e(f"s_cmp_lt_u32 s{sWave}, s45")
    e(f"s_addc_u32 s{sNs}, s46, 0")
    e(f"s_cmp_eq_u64 s[{sAny}:{sAny+1}], 0")
    e(f"s_cbranch_scc1 K2_C4{tag}")
    e("s_waitcnt lgkmcnt(0)")
    for j in range(4):
        e(f"v_cmpx_lt_i32 vcc, {j}, v{vRem}")
        e(f"v_add_u32 v{POS+j}, v{POS+j}, v{RANK+j}")
        e(f"ds_write_b32 v{POS+j}, v{SRC+j} offset:{L_IDX}")
    e("s_mov_b64 exec, -1")
    lab(f"K2_C4{tag}")

def qn_part(tag, nw, w0):
    e(f"s_sub_u32 s45, s{sWave}, {w0}")
    e(f"v_add_u32 v{tF}, s45, v{tF}")
    e(f"v_lshlrev_b32 v{tF}, 2, v{tF}")
    lab(f"K2_QN{tag}")
    e(f"v_cmpx_lt_u32 vcc, s45, v{tD2}")
    e(f"s_cbranch_execz K2_QNX{tag}")
    e(f"ds_write_b32 v{tF}, v{vLane} offset:{L_QN}")
    e(f"s_add_u32 s45, s45, {nw}")
    e(f"v_add_u32 v{tF}, {4*nw}, v{tF}")
    e(f"s_branch K2_QN{tag}")
    lab(f"K2_QNX{tag}")
    e("s_mov_b64 exec, -1")

def li_addr():
    e(f"s_lshl_b32 s45, s{sS0}, 6")
    e(f"s_add_u32 s45, s45, {L_IDX}")
    e(f"v_add_u32 v{vLi}, s45, v{vG4}")

def first_reads():
    e(f"s_lshl_b32 s46, s{sS0}, 4")
    e(f"s_add_u32 s46, s46, {L_QN}")
    e(f"v_add_u32 v{vLq}, s46, v{vR4}")
    e(f"v_lshl_add_u32 v{tB}, v{vLane}, 2, s46")
    e(f"v_mov_b32 v{tA}, 0")
    for x in qn_read(0): e(x)
    e(f"ds_read2_b32 v[{tC}:{tC+1}], v{tB} offset0:0 offset1:1")
    e(f"ds_read_b32 v{tE}, v{tA} offset:{L_FLG}")

def round_state():
    e(f"s_lshl_b32 s45, s{sS0}, 8")
    e(f"s_add_u32 s45, s45, {L_AL}")
    e(f"v_add_u32 v{vLa}, s45, v{vLa0}")
    e(f"s_sub_u32 s{sT0}, {NPOS}, s{sNs}")
    e(f"s_lshl_b32 s45, s{sS0}, 2")
    e(f"s_sub_u32 s45, s{sQt}, s45")
    e(f"s_lshl_b32 s46, s{sNs}, 2")
    e("s_min_u32 s45, s45, s46")
    e(f"v_lshlrev_b32 v{tF}, 4, v{vLane}")
    e(f"v_add_u32 v{tF}, {L_W3}, v{tF}")
    e("s_waitcnt lgkmcnt(0)")
    for x in vq_op(): e(x)
    e(f"v_cmp_ne_u32 vcc, v{tC}, v{tC+1}")
    e(f"v_readfirstlane_b32 s47, v{tC}")
    e(f"v_readfirstlane_b32 s{sMore}, v{tE}")
    for x in qn_read(1): e(x)
    e(f"ds_read_b64 v[{QB[0]}:{QB[0]+1}], v{tF}")
    e(f"ds_read_b64 v[{QB[1]}:{QB[1]+1}], v{tF} offset:8")
    e("s_bfm_b32 s46, s45, 0")
    e(f"s_and_b32 s{sMask}, vcc_lo, s46")
    e("s_sub_u32 s45, s45, 1")
    e(f"s_bitset1_b32 s{sMask}, s45")
    e(f"s_lshl_b32 s45, s{sT0}, 2")
    e(f"s_lshl_b32 s{sMask}, s{sMask}, s45")
    e("s_lshl_b32 s47, s47, 10")
    e(f"s_add_u32 s47, s47, {L_AGG}")
    e(f"v_lshl_add_u32 v{vFa[0]}, v{vLane}, 3, s47")
    e(f"s_lshl_b32 s45, s{sT0}, 4")
    e(f"v_subrev_u32 v{vLq}, s45, v{vLq}")
    e(f"v_mov_b32 v{vFa[1]}, v{vFa[0]}")
    e(f"s_or_b32 s45, s{sMore}, s{sPhase}")
    e(f"s_cselect_b32 s{sLast}, 0, 1")
    e(f"s_and_b32 s{sEarly}, s{sLast}, s{sIsH}")

def a_scatter(tag, vm):
    e(f"s_cmp_eq_u64 s[{sAny}:{sAny+1}], 0")
    e(f"s_cbranch_scc1 K2_C5{tag}")
    e(f"s_waitcnt vmcnt({vm})")
    for j in range(4):
        o = OHT if j % 2 == 0 else FL4
        e(f"v_cmpx_lt_i32 vcc, {j}, v{vRem}")
        e(f"v_and_b32 v{tC}, 0x30, v{POS+j}")
        e(f"v_lshl_add_u32 v{RANK+j}, v{POS+j}, 2, s{sAL}")
        e(f"v_lshlrev_b64 v[{o}:{o+1}], v{tC}, s[{sOH}:{sOH+1}]")
        e(f"ds_write2_b64 v{RANK+j}, v[{EA+2*j}:{EA+2*j+1}], v[{o}:{o+1}] offset0:0 offset1:1")
    e("s_mov_b64 exec, -1")
    lab(f"K2_C5{tag}")

XQ = [2, 6, 10, 14, 18, 22, 26, 30, 80, 84, 88, 92]
QA = [112, 116, 120]
def q_gemm():
    for s in range(4):
        for nt in range(3):
            b = XQ[s * 3 + nt]
            e(f"ds_read_b128 v[{b}:{b+3}], v{T4+s} offset:{4096*nt}")
    e(f"s_mov_b32 s46, {hex(NLOG2E)}")
    e(f"s_mov_b32 s47, {hex(NLOG2E)}")
    e(f"v_mul_u32_u24 v{vF}, 320, v{vL16}")
    e(f"v_lshl_add_u32 v{vF}, v{vG4}, 1, v{vF}")
    e(f"s_lshl_b32 s45, s{sWave}, 5")
    e(f"s_add_u32 s45, s45, {L_Q - 256}")
    e(f"v_add_u32 v{vF}, s45, v{vF}")
    for s in range(4):
        e(f"s_waitcnt lgkmcnt({9-3*s})")
        for nt in range(3):
            b = XQ[s * 3 + nt]
            d = vr(QA[nt], 4)
            c = "0" if s == 0 else d
            e(f"v_mfma_f32_16x16x32_bf16 {d}, v[{W2F+4*s}:{W2F+3+4*s}], v[{b}:{b+3}], {c}")
    e("s_nop 6")
    for nt in range(3):
        a = QA[nt]
        e(f"v_pk_mul_f32 v[{a}:{a+1}], v[{a}:{a+1}], s[46:47]")
        e(f"v_pk_mul_f32 v[{a+2}:{a+3}], v[{a+2}:{a+3}], s[46:47]")
        e(f"v_cvt_pk_bf16_f32 v{a}, v{a}, v{a+1}")
        e(f"v_cvt_pk_bf16_f32 v{a+1}, v{a+2}, v{a+3}")
        if nt == 2:
            e("s_mov_b32 exec_lo, 0x00ff00ff")
            e("s_mov_b32 exec_hi, 0x00ff00ff")
        e(f"ds_write_b64 v{vF}, v[{a}:{a+1}] offset:{5120*nt}")
    e("s_mov_b64 exec, -1")
    e(f"v_mov_b64 v[{ACC[0]}:{ACC[0]+1}], 0")
    e(f"v_mov_b64 v[{ACC[1]}:{ACC[1]+1}], 0")

def G_all():
    for q in range(4):
        for x in G_op(q): e(x)

def gen_k2():
    begin(K2)
    e(f"s_cmp_ge_u32 s2, {T}")
    e("s_cbranch_scc1 K2_END")
    stamp_rt(0); stamp(1)
    e(f"s_load_dwordx2 s[{SR}:{SR+1}], s[0:1], 64")
    e(f"s_load_dwordx2 s[{SW}:{SW+1}], s[0:1], 64")
    e(f"s_load_dwordx2 s[{SP}:{SP+1}], s[0:1], 64")
    e(f"s_load_dwordx2 s[{SX}:{SX+1}], s[0:1], 0")
    e(f"s_load_dwordx2 s[{SO}:{SO+1}], s[0:1], 48")
    e(f"v_lshrrev_b32 v{tB}, 6, v0")
    e(f"v_bfe_u32 v{tA}, v0, 2, 7")
    e(f"s_and_b32 s45, s2, 7")
    e(f"v_readfirstlane_b32 s{sWave}, v{tB}")
    e(f"s_lshl_b32 s45, s45, 5")
    e(f"s_lshr_b32 s46, s2, 3")
    e(f"s_or_b32 s{sTile}, s45, s46")
    e(f"v_lshlrev_b32 v{tC}, 10, v{tA}")
    e(f"s_lshl_b32 s47, s{sTile}, 2")
    e(f"s_add_u32 s47, s47, {OFF_TAB}")
    e(f"s_mov_b32 s{SR+2}, {OFF_TAB + G*1024}")
    e(f"s_mov_b32 s{SR+3}, 0x00020000")
    e(f"v_and_b32 v{vLane}, 63, v0")
    e(f"v_mul_u32_u24 v{vBase}, {CH}, v{tA}")
    e(f"v_and_b32 v{tD2}, 3, v0")
    e(f"v_lshrrev_b32 v{tB}, 9, v0")
    e(f"v_lshl_add_u32 v{vI0}, v{tB}, 2, v{tD2}")
    e(f"v_lshlrev_b32 v{vI0}, 2, v{vI0}")
    e(f"s_mov_b32 s{SW+2}, {WS_SIZE}")
    e(f"s_mov_b32 s{SW+3}, 0x00020000")
    e(f"v_lshrrev_b32 v{vG4}, 4, v{vLane}")
    e(f"v_and_b32 v{vL16}, 15, v{vLane}")
    e(f"s_mul_i32 s33, s{sTile}, 625")
    e("s_add_u32 s34, s33, 625")
    e(f"s_lshr_b32 s{sN0}, s33, 4")
    e("s_lshr_b32 s34, s34, 4")
    e(f"s_sub_u32 s{sNc}, s34, s{sN0}")
    e(f"s_lshr_b32 s{sIsH}, s{sWave}, 3")
    e(f"s_mov_b32 s{sPhase}, 0")
    e(f"s_mov_b32 s{sRnd}, 32")
    e(f"s_mov_b32 s{sPre}, 0")
    e(f"s_mov_b32 s{sSlow}, 0")
    e(f"s_mov_b32 s{sAL}, {L_AL}")
    e(f"s_mov_b64 s[{sOH}:{sOH+1}], 0x3f80")
    e(f"v_and_b32 v{vR4}, 12, v{vLane}")
    e(f"v_mov_b32 v{vMin1}, 0")
    e(f"s_bfm_b64 exec, s{sNc}, 0")
    e(f"v_mov_b32 v{vMin1}, 1")
    e("s_mov_b64 exec, -1")
    e(f"s_cmp_ge_u32 s{sWave}, 8")
    e("s_cbranch_scc1 K2_H")
    e("s_setprio 2")
    e(f"v_lshlrev_b32 v{vG4}, 2, v{vG4}")
    e("s_waitcnt lgkmcnt(0)")
    stamp(2)
    e(f"buffer_load_dword v{vTab}, v{tC}, s[{SR}:{SR+3}], s47 offen")
    consts_a()
    e("s_waitcnt vmcnt(0)")
    stamp(3)
    load_recs("a")
    consts_b()
    lab("K2_ROUND")
    e("s_waitcnt lgkmcnt(0)")
    e("s_barrier")
    count_part("s", 0, True)
    e("s_waitcnt lgkmcnt(0)")
    e("s_barrier")
    stamp(5)
    scan_part("s", "K2_SPLIT")
    li_addr()
    e(f"s_cmp_eq_u32 s{sSlow}, 0")
    e("s_cbranch_scc1 K2_S1")
    qn_part("s", 16, 0)
    lab("K2_S1")
    e("s_waitcnt lgkmcnt(0)")
    e("s_barrier")
    stamp(6); stamp_rt2(6)
    for x in idx_reads(0): e(x)
    e(f"s_cmp_eq_u32 s{sNs}, 0")
    e("s_cbranch_scc1 K2_G0N")
    e("s_waitcnt lgkmcnt(0)")
    G_all()
    e("s_branch K2_G0X")
    lab("K2_G0N")
    e("s_waitcnt vmcnt(0)")
    lab("K2_G0X")
    stamp(7)
    e("s_setprio 0")
    a_scatter("s", 4)
    first_reads()
    round_state()
    e("s_barrier")
    e(f"s_cmp_eq_u32 s{sNs}, 0")
    e("s_cbranch_scc1 K2_REND")
    e("s_branch K2_JOIN")
    lab("K2_H")
    e(f"v_lshlrev_b32 v{tA}, 4, v0")
    e(f"v_mov_b64 v[{FL4}:{FL4+1}], 0")
    e(f"v_mov_b64 v[{FL4+2}:{FL4+3}], 0")
    e(f"v_subrev_u32 v{tA}, 8192, v{tA}")
    e(f"v_add_u32 v{tB}, 65536, v{tA}")
    e("s_waitcnt lgkmcnt(0)")
    stamp(2)
    e(f"buffer_load_dword v{vTab}, v{tC}, s[{SR}:{SR+3}], s47 offen")
    for kk in range(8):
        e(f"ds_write_b128 v{tA}, v[{FL4}:{FL4+3}] offset:{8192*kk}")
    e(f"ds_write_b128 v{tB}, v[{FL4}:{FL4+3}]")
    e(f"v_xor_b32 v{T4}, v{vG4}, v{vL16}")
    e(f"v_lshlrev_b32 v{T4}, 4, v{T4}")
    e(f"v_lshl_add_u32 v{tA}, v{vG4}, 8, v{T4}")
    e(f"s_and_b32 s45, s{sWave}, 3")
    e("s_lshl_b32 s45, s45, 6")
    e(f"v_xor_b32 v{tA}, s45, v{tA}")
    e(f"s_sub_u32 s46, s{sWave}, 8")
    e("s_lshl_b32 s46, s46, 10")
    e(f"s_add_u32 m0, s46, {L_X}")
    e(f"s_lshl_b32 s47, s{sN0}, 8")
    e("s_add_u32 s47, s47, s46")
    e(f"s_mov_b32 s{SX+2}, {N*256}")
    e(f"s_mov_b32 s{SX+3}, 0x00020000")
    e(f"v_lshlrev_b32 v{tB}, 4, v{vLane}")
    e(f"s_lshl_b32 s{sGw}, s46, 2")
    e(f"s_add_u32 s{sGw}, s{sGw}, {OFF_WF}")
    e(f"v_lshl_add_u32 v{T4}, v{vL16}, 8, v{T4}")
    e(f"v_add_u32 v{T4}, {L_X}, v{T4}")
    for s in range(1, 4):
        e(f"v_xor_b32 v{T4+s}, {64*s}, v{T4}")
    e(f"v_lshlrev_b32 v{vG4}, 2, v{vG4}")
    e("s_waitcnt vmcnt(0)")
    stamp(3)
    load_recs("h")
    e(f"buffer_load_dwordx4 v{tA}, s[{SX}:{SX+3}], s47 offen lds")
    e(f"s_cmp_ge_u32 s{sWave}, 11")
    e("s_cbranch_scc1 K2_B2")
    e(f"s_cmp_eq_u32 s{sWave}, 10")
    e("s_cbranch_scc1 K2_B1")
    e(f"s_add_u32 m0, s46, {L_X + 8192}")
    e("s_add_u32 s47, s47, 8192")
    e(f"buffer_load_dwordx4 v{tA}, s[{SX}:{SX+3}], s47 offen lds")
    e("s_branch K2_B2")
    lab("K2_B1")
    e(f"s_mov_b32 m0, {L_W3}")
    e(f"s_mov_b32 s45, {OFF_W3}")
    e(f"buffer_load_dwordx4 v{tB}, s[{SW}:{SW+3}], s45 offen lds")
    lab("K2_B2")
    for s in range(4):
        e(f"buffer_load_dwordx4 v[{W2F+4*s}:{W2F+3+4*s}], v{tB}, s[{SW}:{SW+3}], s{sGw} offen offset:{1024*s}")
    e("s_waitcnt lgkmcnt(0)")
    e("s_barrier")
    consts_a()
    consts_b()
    count_part("h", 5)
    e("s_waitcnt lgkmcnt(0)")
    e("s_barrier")
    stamp(5)
    scan_part("h", "K2_HSPLIT")
    qn_part("h", 8, 8)
    li_addr()
    e("s_waitcnt vmcnt(4) lgkmcnt(0)")
    e("s_barrier")
    stamp(6); stamp_rt2(6)
    for x in idx_reads(0): e(x)
    e("s_waitcnt vmcnt(0)")
    a_scatter("h", 0)
    q_gemm()
    e("s_waitcnt lgkmcnt(0)")
    e("s_barrier")
    e(f"s_cmp_eq_u32 s{sNs}, 0")
    e("s_cbranch_scc1 K2_H2")
    G_all()
    lab("K2_H2")
    stamp(7)
    first_reads()
    round_state()
    e(f"s_cmp_eq_u32 s{sNs}, 0")
    e("s_cbranch_scc1 K2_REND")
    lab("K2_JOIN")
    for x in A_read(0): e(x)
    for x in idx_reads(1): e(x)
    e(f"s_lshl_b32 s45, s{sT0}, 8")
    e(f"v_subrev_u32 v{vLa}, s45, v{vLa}")
    e(f"s_lshl_b32 s45, s{sT0}, 6")
    e(f"v_subrev_u32 v{vLi}, s45, v{vLi}")
    e("s_waitcnt vmcnt(0)")
    stamp(8)
    for x in T_reads(): e(x)
    e("s_setprio 3")
    e("s_waitcnt lgkmcnt(5)")
    for x in M_ops(0): e(x)
    e("s_waitcnt lgkmcnt(0)")
    e(f"s_cmp_lt_u32 s{sNs}, 2")
    e("s_cbranch_scc1 K2_G1X")
    G_all()
    lab("K2_G1X")
    e("s_nop 7")
    e("s_nop 3")
    for x in exps(0, 0): e(x)
    stamp(9); stamp_rt2(9)
    for ns in (5, 4, 3, 2, 1):
        e(f"s_cmp_eq_u32 s{sNs}, {ns}")
        e(f"s_cbranch_scc1 K2_POS{NPOS-ns}")
    mh = M_ops(1); ml = M_ops(0)
    WU = 34
    for t in range(NPOS):
        n1 = t < NPOS - 1; n2 = t < NPOS - 2
        lab(f"K2_POS{t}")
        if 'noprio' not in EXP: e(f"s_setprio {min(3, NPOS-1-t)}")
        tail = []
        if n1: tail += ["s_waitcnt lgkmcnt(0)"] + vq_op() + A_read(t + 1)
        if n2: tail += idx_reads(t + 2)
        unit(t, 0, 0, [mh[0]], tail)
        unit(t, 0, 1, [mh[1]], [])
        unit(t, 0, 2, [mh[2]], (["s_waitcnt vmcnt(0)"] + T_reads()) if n1 else [])
        if not n1:
            e(f"s_cmp_eq_u32 s{sEarly}, 0")
            e("s_cbranch_scc1 K2_NOE")
            wu_loads(WU)
            e(f"s_mov_b32 s{sPre}, 1")
            lab("K2_NOE")
        unit(t, 0, 3, [], [])
        unit(t, 1, 0, ["s_waitcnt lgkmcnt(0)", ml[0]] if n1 else [], (G_op(0) + G_op(1)) if n2 else [])
        unit(t, 1, 1, [ml[1]] if n1 else [], (G_op(2) + G_op(3)) if n2 else [])
        unit(t, 1, 2, [ml[2]] if n1 else [], qn_read(t + 2) if n2 else [])
        unit(t, 1, 3, [], [])
    lab("K2_REND")
    stamp(10); stamp_rt2(10)
    e(f"s_cmp_eq_u32 s{sLast}, 0")
    e("s_cbranch_scc1 K2_MORE")
    lab("K2_FIN")
    UA = 84
    FR = [2, 6, 10, 14, 18, 22, 26, 30, 68, 72, 76, 80]
    e(f"s_cmp_lt_u32 s{sWave}, 8")
    e("s_cbranch_scc1 K2_F1")
    e(f"s_cmp_lg_u32 s{sPre}, 0")
    e("s_cbranch_scc1 K2_F0")
    wu_loads(WU)
    lab("K2_F0")
    for s in range(4):
        for nt in range(3):
            b = FR[s * 3 + nt]
            e(f"ds_read_b128 v[{b}:{b+3}], v{T4+s} offset:{4096*nt}")
    for s in range(4):
        e(f"s_waitcnt vmcnt({7-s}) lgkmcnt({9-3*s})")
        for nt in range(3):
            b = FR[s * 3 + nt]
            d = vr(UA + 4 * nt, 4)
            c = "0" if s == 0 else d
            e(f"v_mfma_f32_16x16x32_bf16 {d}, v[{WU+4*s}:{WU+3+4*s}], v[{b}:{b+3}], {c}")
    lab("K2_F1")
    e(f"v_lshlrev_b32 v{tE}, 4, v0")
    e(f"s_mul_i32 s45, s{sWave}, 272")
    e(f"s_add_u32 s45, s45, {L_Q}")
    e(f"v_lshl_add_u32 v{tB}, v{vLane}, 2, s45")
    e(f"s_mov_b32 s46, {hex(FSC)}")
    e(f"s_mov_b32 s47, {hex(FSC)}")
    e(f"v_mul_u32_u24 v{tD2}, 272, v{vL16}")
    e(f"v_lshl_add_u32 v{tC}, v{vG4}, 2, v{tD2}")
    e(f"v_add_u32 v{tC}, {L_Q}, v{tC}")
    e("s_waitcnt lgkmcnt(0)")
    e("s_barrier")
    stamp(11)
    CV = [96, 100, 104]
    e(f"ds_read_b128 v[{CV[0]}:{CV[0]+3}], v{tE} offset:{L_AGG}")
    e(f"ds_read_b128 v[{CV[1]}:{CV[1]+3}], v{tE} offset:{L_AGG + 16384}")
    def conv(k):
        b = CV[k]
        e(f"v_cvt_f32_f64 v{b}, v[{b}:{b+1}]")
        e(f"v_cvt_f32_f64 v{b+1}, v[{b+2}:{b+3}]")
        e(f"v_pk_mul_f32 v[{b}:{b+1}], v[{b}:{b+1}], s[46:47]")
        e(f"v_cvt_pk_bf16_f32 v{b}, v{b}, v{b+1}")
        e(f"ds_write_b32 v{tB}, v{b} offset:{16*272*k}")
    e(f"s_cmp_ge_u32 s{sWave}, 8")
    e("s_cbranch_scc1 K2_F2")
    e(f"v_add_u32 v{tA}, {L_AGG + 32768}, v{tE}")
    e(f"ds_read_b128 v[{CV[2]}:{CV[2]+3}], v{tA}")
    e("s_waitcnt lgkmcnt(0)")
    conv(2)
    lab("K2_F2")
    e("s_waitcnt lgkmcnt(0)")
    conv(0); conv(1)
    e(f"v_lshrrev_b32 v{tA}, 4, v0")
    e(f"v_mul_u32_u24 v{tA}, 272, v{tA}")
    e(f"v_lshl_add_u32 v{tA}, v{vL16}, 4, v{tA}")
    e(f"v_add_u32 v{tA}, {L_STAGE}, v{tA}")
    e("s_waitcnt lgkmcnt(0)")
    e("s_barrier")
    e(f"s_cmp_lt_u32 s{sWave}, 8")
    e("s_cbranch_scc1 K2_F3")
    for s in range(4):
        for nt in range(3):
            b = FR[s * 3 + nt]
            e(f"ds_read_b128 v[{b}:{b+3}], v{tC} offset:{16*272*nt + 64*s}")
    e(f"v_lshl_add_u32 v{tB}, v{vG4}, 1, v{tD2}")
    e(f"s_lshl_b32 s45, s{sWave}, 5")
    e(f"s_add_u32 s45, s45, {L_STAGE - 256}")
    e(f"v_add_u32 v{tB}, s45, v{tB}")
    e(f"s_mov_b32 s46, {hex(NLOG2E)}")
    e(f"s_mov_b32 s47, {hex(NLOG2E)}")
    e("s_waitcnt vmcnt(0)")
    for s in range(4):
        e(f"s_waitcnt lgkmcnt({9 - 3*s})")
        for nt in range(3):
            b = FR[s * 3 + nt]
            d = vr(UA + 4 * nt, 4)
            e(f"v_mfma_f32_16x16x32_bf16 {d}, v[{WU+16+4*s}:{WU+19+4*s}], v[{b}:{b+3}], {d}")
    e("s_nop 6")
    O = 2
    for nt in range(3):
        a = O + 4 * nt; u = UA + 4 * nt
        for h in (0, 2): e(pk("mul", a + h, p2(u + h), "s[46:47]"))
        for i in range(4): e(f"v_exp_f32 v{a+i}, v{a+i}")
    for nt in range(3):
        a = O + 4 * nt
        for h in (0, 2): e(pk("add", a + h, p2(a + h), "1.0") + " op_sel_hi:[1,0]")
        for i in range(4): e(f"v_rcp_f32 v{a+i}, v{a+i}")
    for nt in range(3):
        a = O + 4 * nt; u = UA + 4 * nt
        for h in (0, 2): e(pk("mul", a + h, p2(a + h), p2(u + h)))
        e(f"v_cvt_pk_bf16_f32 v{a}, v{a}, v{a+1}")
        e(f"v_cvt_pk_bf16_f32 v{a+1}, v{a+2}, v{a+3}")
        e(f"ds_write_b64 v{tB}, v[{a}:{a+1}] offset:{16*272*nt}")
    lab("K2_F3")
    e(f"s_lshl_b32 s45, s{sNc}, 4")
    e(f"v_cmp_gt_u32 vcc, s45, v0")
    e(f"s_lshl_b32 s45, s{sN0}, 8")
    e("s_waitcnt lgkmcnt(0)")
    e("s_barrier")
    e("s_mov_b64 exec, vcc")
    e("s_cbranch_execz K2_XW")
    e(f"ds_read_b128 v[2:5], v{tA}")
    e("s_waitcnt lgkmcnt(0)")
    e(f"buffer_store_dwordx4 v[2:5], v{tE}, s[{SO}:{SO+3}], s45 offen {OUTST}")
    lab("K2_XW")
    if PROF: e("s_waitcnt vmcnt(0)")
    stamp(12); stamp_rt(13)
    stamp_dump(SW, sWave, 0x100000)
    lab("K2_END")
    e("s_endpgm")
    for t in range(NPOS):
        for p in range(2):
            for k in range(4):
                lab(f"K2_FL{t}_{p}{k}")
                e(f"v_add_f32 v{vF}, v{ACC[p]}, v{ACC[p]+1}")
                e(f"v_mov_b64 v[{ACC[p]}:{ACC[p]+1}], 0")
                e(f"v_cvt_f64_f32 v[{vF}:{vF+1}], v{vF}")
                e(f"ds_add_f64 v{vFa[p]}, v[{vF}:{vF+1}] offset:{512*p}")
                e(f"v_add_u32 v{vFa[p]}, 1024, v{vFa[p]}")
                e(f"s_branch K2_RT{t}_{p}{k}")
    for tag in ("s", "h"):
        lab(f"K2_MARK{tag}")
        e(f"v_mov_b32 v{tC}, 0")
        e(f"ds_write_b32 v{tC}, v{tA} offset:{L_FLG}")
        e(f"s_branch K2_MARKX{tag}")
    lab("K2_HSPLIT")
    e("s_waitcnt vmcnt(0) lgkmcnt(0)")
    e("s_barrier")
    q_gemm()
    e("s_branch K2_PAIR")
    lab("K2_SPLIT")
    e("s_waitcnt vmcnt(0) lgkmcnt(0)")
    e("s_barrier")
    e("s_branch K2_PAIR")
    lab("K2_MORE")
    e("s_waitcnt vmcnt(0) lgkmcnt(0)")
    e("s_barrier")
    e(f"s_cmp_eq_u32 s{sPhase}, 0")
    e("s_cbranch_scc1 K2_NEXT")
    e(f"s_cmp_lt_u32 s{sPhase}, 4")
    e("s_cbranch_scc1 K2_PAIR")
    e(f"s_cmp_eq_u32 s{sMore}, 0")
    e("s_cbranch_scc1 K2_FIN")
    lab("K2_NEXT")
    e(f"s_mov_b32 s{sPhase}, -1")
    e(f"s_add_u32 s{sRnd}, s{sRnd}, 32")
    lab("K2_PAIR")
    e(f"s_mov_b32 s{sSlow}, 1")
    e(f"s_add_u32 s{sPhase}, s{sPhase}, 1")
    e(f"s_sub_u32 s45, s{sPhase}, 1")
    e("s_max_i32 s45, s45, 0")
    e(f"s_add_u32 s45, s45, s{sRnd}")
    e("s_sub_u32 s45, s45, 32")
    e(f"v_bfe_u32 v{tA}, v0, 2, 7")
    e(f"v_mul_u32_u24 v{vBase}, {CH}, v{tA}")
    e(f"v_and_b32 v{tA}, 3, v0")
    e(f"v_lshrrev_b32 v{tB}, 9, v0")
    e(f"v_lshl_add_u32 v{vI0}, v{tB}, 2, v{tA}")
    e(f"v_lshl_add_u32 v{vI0}, v{vI0}, 2, s45")
    load_recs("b")
    e(f"s_cmp_eq_u32 s{sPhase}, 0")
    e("s_cbranch_scc1 K2_PA")
    e(f"v_min_i32 v{vRem}, 1, v{vRem}")
    lab("K2_PA")
    lists_init_all()
    e("s_branch K2_ROUND")

gen_k1()
K1ST = os.environ.get("K1ST", "sc0 sc1")
if K1ST == "plain": K1ST = ""
if K1ST:
    for i, l in enumerate(out):
        if "buffer_store" in l and "s70" not in l:
            out[i] = ("    s_nop 0" if K1ST == "none" else l + " " + K1ST)
gen_k2()
K3TXT = ""
if PROF == 2:
    HEADER = HEADER.replace(".amdgcn_target", "; @launch kernel=mpnn_red_kernel grid=(1,1,1) block=(256,1,1) lds=1024\n.amdgcn_target")
    begin("mpnn_red_kernel")
    e("s_cmp_ge_u32 s2, 1")
    e("s_cbranch_scc1 K3_END")
    e("s_load_dwordx4 s[4:7], s[0:1], 56")
    e("v_lshlrev_b32 v1, 10, v0")
    e("v_lshlrev_b32 v2, 2, v0")
    e("v_mov_b32 v3, 0")
    e("ds_write_b32 v2, v3")
    e("s_waitcnt lgkmcnt(0)")
    e("s_barrier")
    srd(8, 6, 7, WS_SIZE)
    srd(12, 4, 5, 256)
    def red(base, nw, words):
        e(f"s_mov_b32 s16, {base}")
        for w in range(nw):
            for (wd, i, neg) in words:
                e(f"buffer_load_dword v4, v1, s[8:11], s16 offen offset:{64*w + 4*i}")
                e("s_waitcnt vmcnt(0)")
                if neg: e("v_not_b32 v4, v4")
                e(f"ds_max_u32 v3, v4 offset:{4*wd}")
                e("s_waitcnt lgkmcnt(0)")
    red(OFF_DBG + 0x100000, 16, [(2,0,1),(4,9,1),(5,9,0),(6,10,0),(7,10,1),(11,0,0),(12,4,0),(13,6,0)])
    red(OFF_DBG + 0x100000, 8, [(3,13,0),(14,13,1)])
    e("v_cmp_gt_u32 vcc, 125, v0")
    e("s_and_saveexec_b64 s[20:21], vcc")
    red(OFF_DBG, 10, [(0,0,1),(8,9,0),(10,0,0)])
    e("s_mov_b32 s17, 128000")
    e("v_add_u32 v1, s17, v1")
    red(OFF_DBG, 10, [(0,0,1),(9,9,0),(10,0,0)])
    e("s_mov_b64 exec, s[20:21]")
    e("s_barrier")
    e("ds_read_b32 v4, v2")
    e("s_waitcnt lgkmcnt(0)")
    e("buffer_store_dword v4, v2, s[12:15], 0 offen")
    lab("K3_END")
    e("s_endpgm")
    K3TXT = kd("mpnn_red_kernel", 16, 32)
text = HEADER + "\n".join(out) + "\n" + kd(K1, 128, 100 if PROF else 48) + kd(K2, K2_VGPR, 100 if PROF else 72) + K3TXT
path = sys.argv[1] if len(sys.argv) > 1 else "standalone__mpnn_edge_mlp__graph.s"
open(path, "w").write(text)
print("wrote", path, len(out), "lines; K2 LDS end", L_END)
```

```python
def meta(names, vgpr=256, sgpr=102, maxwg=1024, ksz=72):
    s = "\n.amdgpu_metadata\n---\namdhsa.version: [1, 2]\namdhsa.kernels:\n"
    for n in names:
        s += f"""  - .name: {n}
    .symbol: {n}.kd
    .kernarg_segment_size: {ksz}
    .kernarg_segment_align: 8
    .group_segment_fixed_size: 0
    .private_segment_fixed_size: 0
    .wavefront_size: 64
    .sgpr_count: {sgpr}
    .vgpr_count: {vgpr}
    .max_flat_workgroup_size: {maxwg}
    .args:
      - {{.name: kernargs, .size: {ksz}, .offset: 0, .value_kind: by_value}}
"""
    s += "...\n.end_amdgpu_metadata\n"
    return s
```

```python
import sys, subprocess
sys.path.insert(0, "cdna_kernels")

def kernel(name, body, pre="", vgpr=128, iters=200):
    return f"""
.text
.globl {name}
.p2align 8
.type {name},@function
{name}:
    s_load_dwordx2 s[4:5], s[0:1], 0
    s_load_dwordx2 s[6:7], s[0:1], 8
    v_lshrrev_b32 v1, 6, v0
    v_and_b32 v2, 63, v0
    s_nop 1
    v_readfirstlane_b32 s20, v1      ; wave id
    s_waitcnt lgkmcnt(0)
    s_mov_b32 s8, s4
    s_mov_b32 s9, s5
    s_mov_b32 s10, 0x1000000
    s_mov_b32 s11, 0x00020000
    s_mov_b32 s12, s6
    s_mov_b32 s13, s7
    s_mov_b32 s14, 0x10000000
    s_mov_b32 s15, 0x00020000
    v_cvt_f32_u32 v3, v0
    v_mul_f32 v3, 0x3a83126f, v3
""" + "".join(f"    v_add_f32 v{i}, 0x3dcccccd, v3\n" for i in range(8, vgpr)) + f"""
    v_lshlrev_b32 v4, 2, v0          ; lds addr
    v_mov_b32 v5, 0
{pre}
    s_mov_b32 s21, {iters}
    s_barrier
    s_memtime s[16:17]
    s_waitcnt lgkmcnt(0)
L_{name}:
{body}
    s_sub_u32 s21, s21, 1
    s_cmp_lg_u32 s21, 0
    s_cbranch_scc1 L_{name}
    s_waitcnt vmcnt(0) lgkmcnt(0)
    s_memtime s[18:19]
    s_waitcnt lgkmcnt(0)
    s_sub_u32 s18, s18, s16
    s_lshl_b32 s22, s2, 4
    s_add_u32 s22, s22, s20
    s_lshl_b32 s22, s22, 2
    v_mov_b32 v6, s18
    v_mov_b32 v7, s22
    v_cmp_eq_u32 vcc, 0, v2
    s_and_saveexec_b64 s[24:25], vcc
    buffer_store_dword v6, v7, s[8:11], 0 offen
    s_endpgm
.section .rodata,"a"
.p2align 6
.amdhsa_kernel {name}
  .amdhsa_next_free_vgpr {vgpr}
  .amdhsa_next_free_sgpr 96
  .amdhsa_accum_offset {vgpr}
  .amdhsa_group_segment_fixed_size 0
  .amdhsa_kernarg_size 72
  .amdhsa_user_sgpr_count 2
  .amdhsa_user_sgpr_kernarg_segment_ptr 1
  .amdhsa_system_sgpr_workgroup_id_x 1
.end_amdhsa_kernel
"""

def build(kernels, out):
    from cdna_launch_meta import meta
    s = '.amdgcn_target "amdgcn-amd-amdhsa--gfx950"\n' + "".join(t for _, t in kernels) + meta([n for n, _ in kernels])
    open(out + ".s", "w").write(s)
    r = subprocess.run(["clang", "-x", "assembler", "-target", "amdgcn-amd-amdhsa", "-mcpu=gfx950", out + ".s", "-o", out + ".co"], capture_output=True, text=True)
    if r.returncode:
        print(r.stderr[:5000]); sys.exit(1)
```

```python
import json
from mbgen import build
def kern(name, nw, R, vec):
    s = f"""
.text
.globl {name}
.p2align 8
.type {name},@function
{name}:
    s_load_dwordx2 s[8:9], s[0:1], 0
    s_load_dwordx2 s[12:13], s[0:1], 8
    s_mov_b32 s10, 0x1000000
    s_mov_b32 s11, 0x00020000
    s_mov_b32 s14, 0x2000000
    s_mov_b32 s15, 0x00020000
    v_lshrrev_b32 v3, 6, v0
    v_and_b32 v2, 63, v0
    s_nop 1
    v_readfirstlane_b32 s20, v3
    s_and_b32 s21, s2, 7
    s_lshl_b32 s21, s21, 5
    s_lshr_b32 s22, s2, 3
    s_or_b32 s21, s21, s22
    s_lshr_b32 s22, s21, 2
    s_lshl_b32 s22, s22, 4
    s_and_b32 s23, s21, 1
    s_lshl3_add_u32 s22, s23, s22
    s_and_b32 s23, s21, 2
    s_lshl_b32 s23, s23, 9
    s_add_u32 s22, s22, s23
    s_add_u32 s22, s22, 0x700000
    s_mul_i32 s23, s20, {R * 2048}
    s_add_u32 s22, s22, s23
    v_lshlrev_b32 v4, 11, v2
    s_waitcnt lgkmcnt(0)
    s_add_u32 s16, s12, s22
    s_addc_u32 s17, s13, 0
    s_barrier
    s_sleep 32
    s_memtime s[4:5]
    s_waitcnt lgkmcnt(0)
    s_cmp_ge_u32 s20, {nw}
    s_cbranch_scc1 {name}_D
"""
    if vec: s += "    buffer_load_dwordx2 v[10:11], v4, s[12:15], s22 offen sc1\n"
    else:
        for r in range(R): s += f"    s_load_dwordx2 s[{30+2*r}:{31+2*r}], s[16:17], {r*2048}\n"
    s += f"""    s_waitcnt vmcnt(0) lgkmcnt(0)
"""
    if not vec:
        s += "    s_memtime s[24:25]\n"
        for r in range(R): s += f"    v_writelane_b32 v10, s{30+2*r}, {r}\n    v_writelane_b32 v11, s{31+2*r}, {r}\n"
    else: s += "    s_memtime s[24:25]\n"
    s += f"""{name}_D:
    s_memtime s[6:7]
    s_waitcnt lgkmcnt(0)
    s_sub_u32 s6, s6, s4
    s_sub_u32 s24, s24, s4
    v_mov_b32 v20, s6
    v_mov_b32 v21, s24
    s_lshl_b32 s22, s2, 4
    s_add_u32 s22, s22, s20
    s_lshl_b32 s22, s22, 3
    s_mov_b64 exec, 1
    buffer_store_dwordx2 v[20:21], off, s[8:11], s22
    s_endpgm
.section .rodata,"a"
.p2align 6
.amdhsa_kernel {name}
  .amdhsa_next_free_vgpr 32
  .amdhsa_next_free_sgpr 102
  .amdhsa_accum_offset 32
  .amdhsa_group_segment_fixed_size 0
  .amdhsa_kernarg_size 72
  .amdhsa_user_sgpr_count 2
  .amdhsa_user_sgpr_kernarg_segment_ptr 1
  .amdhsa_system_sgpr_workgroup_id_x 1
.end_amdhsa_kernel
"""
    return s
L = {"v2_k": (2, 64, 1), "s4x32_k": (4, 32, 0), "s8x16_k": (8, 16, 0), "s16x8_k": (16, 8, 0), "s1x32_k": (1, 32, 0), "s1x8_k": (1, 8, 0)}
build([(n, kern(n, *a)) for n, a in L.items()], "sm")
json.dump(L, open("sm.json", "w"))
```
